```python
import torch

def _softmax(x, axis=-1):
    return torch.softmax(x, dim=axis)

def _gelu(x):
    return torch.nn.functional.gelu(x, approximate='tanh')

def _silu(x):
    return torch.nn.functional.silu(x)

def _sigmoid(x):
    return torch.sigmoid(x)

def _layernorm(x, axis=-1, eps=1e-05):
    m = x.mean(dim=axis, keepdim=True)
    v = x.var(dim=axis, keepdim=True, unbiased=False)
    return (x - m) / torch.sqrt(v + eps)

def _scatter_add(tgt, idx, src, axis=0):
    return tgt.clone().index_add_(axis, idx, src)

def _segment_sum(src, seg, n):
    out = torch.zeros((n,) + src.shape[1:], dtype=src.dtype)
    return out.index_add_(0, seg, src)

def _pad(x, pw):
    flat = tuple((v for pair in reversed(pw) for v in pair))
    return torch.nn.functional.pad(x, flat)
kernel_name = 'gather_scatter__molecular_angular_painn__graph'

def setup_inputs():

    _w = lambda a: (lambda t: t.to(torch.bfloat16) if t.is_floating_point() else t)(torch.as_tensor(a))
    N, deg, D = (10000, 64, 64)
    n_rbf = max(16, 4)
    E = N * deg
    cutoff = 5.0
    freqs = (torch.arange(1, n_rbf + 1) * torch.pi / cutoff).to(float)
    return {'sv': _w((lambda *s: torch.randn(*s, dtype=torch.bfloat16) * 0.4)(N, 4, D) * 0.3), 'pos': _w((lambda *s: torch.randn(*s, dtype=torch.bfloat16) * 1.6)(N, 3) * 1.2), 'src': _w((lambda lo, hi, *s: torch.randint(lo, hi, s))(0, N, E).to(torch.int64)), 'dst': _w((lambda lo, hi, *s: torch.randint(lo, hi, s))(0, N, E).to(torch.int64)), 'freqs': _w(freqs), 'w_phi1': _w((lambda *s: torch.randn(*s, dtype=torch.bfloat16) * 3.2)(D, D) / D ** 0.5), 'w_phi2': _w((lambda *s: torch.randn(*s, dtype=torch.bfloat16) * 1.6)(D, 3 * D) / D ** 0.5), 'w_rbf': _w((lambda *s: torch.randn(*s, dtype=torch.bfloat16) * 1.6)(n_rbf, 3 * D) / n_rbf ** 0.5)}

def reference(sv, pos, src, dst, freqs, w_phi1, w_phi2, w_rbf):
    N, _, D = sv.shape
    E = src.shape[0]
    PI, cutoff = (3.141592653589793, 5.0)
    s, v = (sv[:, 0, :].clone(), sv[:, 1:, :].clone())
    r_vec = pos[src] - pos[dst]
    d = torch.sqrt((r_vec * r_vec).sum(-1) + 1e-08)
    r_hat = r_vec / d[:, None]
    rbf = torch.sin(d[:, None] * freqs[None, :]) / d[:, None]
    fcut = 0.5 * (torch.cos(PI * d / cutoff) + 1.0)
    fcut = torch.where(d < cutoff, fcut, 0.0 * d)
    Wf = rbf @ w_rbf * fcut[:, None]
    phi = (_silu(s @ w_phi1) @ w_phi2)[src]
    m = phi * Wf
    m_s, m_vv, m_vr = (m[:, :D].clone(), m[:, D:2 * D].clone(), m[:, 2 * D:].clone())
    ds = _segment_sum(m_s, dst, N)
    dv_e = m_vv[:, None, :] * v[src] + m_vr[:, None, :] * r_hat[:, :, None]
    dv = _segment_sum(dv_e.reshape(E, 3 * D), dst, N).reshape(N, 3, D)
    return sv + torch.concatenate([ds[:, None, :], dv], axis=1)
```

```python
import re

TRANS = ('v_exp_f32','v_log_f32','v_rcp_f32','v_rsq_f32','v_sqrt_f32','v_sin_f32','v_cos_f32','v_rcp_iflag_f32')

def _regs(tok, kind):
    out = set()
    for m in re.finditer(r'(?<![\w])%s\[(\d+):(\d+)\]|(?<![\w])%s(\d+)(?![\w])' % (kind, kind), tok):
        if m.group(1) is not None:
            out |= set(range(int(m.group(1)), int(m.group(2)) + 1))
        else:
            out.add(int(m.group(3)))
    return out

def _sregs(tok):
    out = set('s%d' % i for i in _regs(tok, 's'))
    if re.search(r'\bvcc\b', tok): out |= {'vcc_lo', 'vcc_hi'}
    if re.search(r'\bvcc_lo\b', tok): out.add('vcc_lo')
    if re.search(r'\bvcc_hi\b', tok): out.add('vcc_hi')
    if re.search(r'\bexec\b', tok): out |= {'exec_lo', 'exec_hi'}
    if re.search(r'\bexec_lo\b', tok): out.add('exec_lo')
    if re.search(r'\bexec_hi\b', tok): out.add('exec_hi')
    if re.search(r'\bm0\b', tok): out.add('m0')
    return out

class Ins:
    def __init__(self, text):
        self.text = text
        body = text.split(';')[0].strip()
        self.body = body
        self.is_label = body.endswith(':')
        self.is_dir = body.startswith('.')
        self.empty = not body
        self.op = body.split()[0] if body else ''
        rest = body[len(self.op):].strip()
        ops = []; depth = 0; cur = ''
        for ch in rest:
            if ch in '[(': depth += 1
            if ch in '])': depth -= 1
            if ch == ',' and depth == 0:
                ops.append(cur.strip()); cur = ''
            else:
                cur += ch
        if cur.strip(): ops.append(cur.strip())
        self.ops = ops
        op = self.op
        self.valu = op.startswith('v_') and not op.startswith('v_mfma')
        self.mfma = op.startswith('v_mfma')
        self.salu = op.startswith('s_')
        self.vmem = op.startswith('buffer_') or op.startswith('global_')
        self.ds = op.startswith('ds_')
        self.dpp = '_dpp' in op or 'row_shr' in body or 'row_bcast' in body or 'quad_perm' in body or 'wave_shr' in body or 'row_shl' in body or 'row_ror' in body or 'row_mirror' in body
        self.trans = op.replace('_e32','').replace('_e64','') in TRANS
        self.vw = set(); self.vr = set(); self.sw = set(); self.sr = set()
        def core(o): return o.split()[0] if o else o
        cops = [core(o) for o in ops]
        if self.valu or self.mfma:
            if op.startswith('v_cmp'):
                self.sw |= _sregs(cops[0])
                if op.startswith('v_cmpx'): self.sw |= {'exec_lo','exec_hi'}
                for o in cops[1:]: self.vr |= _regs(o,'v'); self.sr |= _sregs(o)
            elif op.startswith('v_readfirstlane') or op.startswith('v_readlane'):
                self.sw |= _sregs(cops[0])
                for o in cops[1:]: self.vr |= _regs(o,'v'); self.sr |= _sregs(o)
            elif op.startswith('v_swap') or op.startswith('v_permlane'):
                for o in cops: self.vw |= _regs(o,'v'); self.vr |= _regs(o,'v')
            elif op.startswith('v_nop'):
                pass
            else:
                self.vw |= _regs(cops[0],'v')
                srcs = cops[1:]
                if '_co_' in op or op.startswith('v_div_scale') or op.startswith('v_mad_u64'):
                    self.sw |= _sregs(cops[1]); srcs = cops[2:]
                for o in srcs: self.vr |= _regs(o,'v'); self.sr |= _sregs(o)
                if op.startswith('v_fmac') or op.startswith('v_dot2c') or self.dpp or op.startswith('v_writelane'):
                    self.vr |= self.vw
        elif self.vmem:
            lds = re.search(r'\blds\b', body) is not None
            self.ldsdma = lds
            if 'store' in op or ('atomic' in op):
                for o in cops: self.vr |= _regs(o,'v'); self.sr |= _sregs(o)
                self.sdata = _regs(cops[0],'v') if op.startswith('buffer_') else _regs(cops[1],'v')
            elif lds:
                for o in cops: self.vr |= _regs(o,'v'); self.sr |= _sregs(o)
                self.sr.add('m0')
            else:
                self.vw |= _regs(cops[0],'v')
                for o in cops[1:]: self.vr |= _regs(o,'v'); self.sr |= _sregs(o)
        elif self.ds:
            if op.startswith('ds_read') or '_rtn' in op or 'permute' in op or 'swizzle' in op:
                self.vw |= _regs(cops[0],'v')
                for o in cops[1:]: self.vr |= _regs(o,'v')
            else:
                for o in cops: self.vr |= _regs(o,'v')
        elif self.salu:
            if op.startswith('s_cmp') or op.startswith('s_bitcmp') or op.startswith('s_cbranch') or op in ('s_branch','s_nop','s_waitcnt','s_barrier','s_endpgm','s_setprio','s_sleep'):
                for o in cops: self.sr |= _sregs(o)
            else:
                if cops: self.sw |= _sregs(cops[0])
                for o in cops[1:]: self.sr |= _sregs(o)
                if 'saveexec' in op: self.sw |= {'exec_lo','exec_hi'}
        if self.mfma:
            self.passes = 8 if '32x32' in op else 4
            self.srcc = _regs(cops[3],'v')
            self.srcab = _regs(cops[1],'v') | _regs(cops[2],'v')

    def states(self):
        if self.op == 's_nop': return int(self.ops[0], 0) + 1
        return 1

def need(p, c):
    n = 0
    if p.valu:
        if c.valu and (c.op.startswith('v_readfirstlane') or c.op.startswith('v_readlane')) and (p.vw & c.vr): n = max(n, 1)
        if p.sw:
            if c.valu and (p.sw & c.sr):
                n = max(n, 4 if (c.op.startswith('v_readlane') or c.op.startswith('v_writelane')) else 2)
            if c.vmem and (p.sw & c.sr): n = max(n, 5)
            if c.salu and (p.sw & c.sr): n = max(n, 1)
            if (p.sw & {'exec_lo','exec_hi'}) and (c.dpp or c.mfma): n = max(n, 5)
        if c.valu and c.dpp and (p.vw & c.vr): n = max(n, 2)
        if p.trans and (c.valu or c.mfma) and not c.trans and (p.vw & c.vr): n = max(n, 1)
        if p.trans and (c.vmem or c.ds) and (p.vw & c.vr): n = max(n, 1)
        if c.mfma and (p.vw & c.vr): n = max(n, 2)
        if c.op.startswith('v_permlane') and (p.vw & c.vr): n = max(n, 2)
        if ('sdwa' in p.op or 'op_sel' in p.body) and c.valu and (p.vw & (c.vr | c.vw)): n = max(n, 1)
    if p.mfma:
        full = 12 if p.passes == 8 else 8
        if c.mfma:
            if p.vw & c.srcab: n = max(n, full)
            if p.vw & c.srcc:
                if not (p.vw == c.srcc and p.passes == c.passes): n = max(n, 10 if p.passes == 8 else 6)
            if (p.vw & c.vw) and not (p.vw == c.srcc): n = max(n, full)
        elif (c.valu or c.vmem or c.ds) and (p.vw & (c.vr | c.vw)): n = max(n, full)
        if c.valu and (p.srcc & c.vw): n = max(n, 7 if p.passes == 8 else 3)
    if p.vmem and hasattr(p, 'sdata') and ('x3' in p.op or 'x4' in p.op):
        if (p.sdata & c.vw): n = max(n, 2)
    if p.ds and ('b96' in p.op or 'b128' in p.op) and p.op.startswith('ds_write'):
        if (p.vr & c.vw) and c.valu: n = max(n, 2)
    if p.salu and 'm0' in p.sw and c.vmem and getattr(c, 'ldsdma', False): n = max(n, 1)
    if p.salu and (p.sw & {'exec_lo','exec_hi'}) and c.dpp: n = max(n, 1)
    return n

class Asm:
    def __init__(self):
        self.lines = []
    def __call__(self, s):
        for ln in s.split('\n'):
            ln = ln.strip()
            if ln: self.lines.append(ln)
    def label(self, name): self.lines.append(name + ':')
    def padded(self, verbose=False):
        out = []; hist = []
        added = 0
        for t in self.lines:
            c = Ins(t)
            if c.empty or c.is_label or c.is_dir:
                out.append(t); continue
            dist = 0; pad = 0
            for p in reversed(hist[-24:]):
                k = need(p, c)
                if k > dist: pad = max(pad, k - dist)
                dist += p.states()
                if dist >= 20: break
            while pad > 0:
                k = min(pad, 16)
                nop = Ins('s_nop %d' % (k - 1)); out.append(nop.text + '  ; auto'); hist.append(nop); pad -= k; added += 1
            out.append(t); hist.append(c)
            if c.op in ('s_branch', 's_endpgm'): hist = []
        if verbose: print('auto nops inserted:', added)
        res = []
        for t in out:
            res.append(t if (t.endswith(':') or t.startswith('.')) else '    ' + t)
        return '\n'.join(res) + '\n'
```

```python
import sys
from asmlib import Asm

N = 10000; E = 640000
NCH = 256
CH = E // NCH
NBIN = 256
P = 4
NKEY = P * 64
CHSTR = 30720
G_BYTES = N * 640
REC_OFF = 8 << 20
O_OFF = 16 << 20
RT_OFF = 17 << 20
WS_USED = 18 << 20
DBASE = 0x38d0
DTHR = 0x409d
NMLP = (N + 63) // 64
NTAB = 32
K1_GRID = NCH + NMLP + NTAB
K1_LDS = 65536 + 2048
L_RT = 0
L_ACC = 65536
CAP = 3072
L_REC = L_ACC + 40 * 1024
L_HIST = L_REC + (CAP + 32) * 16
L_START = L_HIST + NKEY * 4
L_CTR = L_START + NKEY * 4
K2_LDS = L_CTR + 64
PHMUL = (1 << 24) * P // N + 1

OPT = dict(a.split('=') for a in sys.argv[2:])
def opt(k, d): return type(d)(OPT.get(k, d))

def srd(a, d, lo, hi, nbytes):
    a(f"s_mov_b32 s{d}, s{lo}")
    a(f"s_and_b32 s{d+1}, s{hi}, 0xffff")
    a(f"s_mov_b32 s{d+2}, {nbytes}")
    a(f"s_mov_b32 s{d+3}, 0x00020000")

def wave_scan(a, x):
    for sh in (1, 2, 4, 8):
        a(f"v_add_u32_dpp v{x}, v{x}, v{x} row_shr:{sh} row_mask:0xf bank_mask:0xf bound_ctrl:0")
    a(f"v_add_u32_dpp v{x}, v{x}, v{x} row_bcast:15 row_mask:0xa bank_mask:0xf")
    a(f"v_add_u32_dpp v{x}, v{x}, v{x} row_bcast:31 row_mask:0xc bank_mask:0xf")

def wave_max(a, x):
    for sh in (1, 2, 4, 8):
        a(f"v_max_u32_dpp v{x}, v{x}, v{x} row_shr:{sh} row_mask:0xf bank_mask:0xf bound_ctrl:0")
    a(f"v_max_u32_dpp v{x}, v{x}, v{x} row_bcast:15 row_mask:0xa bank_mask:0xf")
    a(f"v_max_u32_dpp v{x}, v{x}, v{x} row_bcast:31 row_mask:0xc bank_mask:0xf")

M = '0xffff0000'

def k1(a):
    a.label('painn_prep_kernel')
    a(f"s_cmp_ge_u32 s2, {K1_GRID}")
    a("s_cbranch_scc1 K1_END")
    a("s_load_dwordx16 s[16:31], s[0:1], 0")
    a("s_load_dwordx2 s[32:33], s[0:1], 80")
    a("v_lshrrev_b32 v1, 6, v0")
    a("v_and_b32 v2, 63, v0")
    a("v_readfirstlane_b32 s3, v1")
    a(f"s_cmp_ge_u32 s2, {NCH + NMLP}")
    a("s_cbranch_scc1 K1_TAB")
    a(f"s_cmp_ge_u32 s2, {NCH}")
    a("s_cbranch_scc1 K1_MLP")
    HIST = 65536; START = 65536 + 1024
    SRC = list(range(8, 13)); DST = list(range(13, 18))
    PS = [list(range(20 + 6 * k, 23 + 6 * k)) for k in range(5)]
    PD = [list(range(23 + 6 * k, 26 + 6 * k)) for k in range(5)]
    a("v_lshlrev_b32 v3, 2, v0")
    a("v_lshlrev_b32 v4, 4, v2")
    a(f"s_mul_i32 s4, s2, {CH * 4}")
    a("s_waitcnt lgkmcnt(0)")
    srd(a, 36, 20, 21, E * 4)
    srd(a, 40, 22, 23, E * 4)
    srd(a, 44, 18, 19, N * 6)
    srd(a, 48, 32, 33, WS_USED)
    for k in range(5):
        a(f"s_add_u32 s5, s4, {k * 2048}")
        a(f"buffer_load_dword v{SRC[k]}, v3, s[36:39], s5 offen")
        a(f"buffer_load_dword v{DST[k]}, v3, s[40:43], s5 offen")
    a("s_lshl_b32 s6, s3, 10")
    for k in range(8):
        a(f"s_add_u32 s5, s6, {k * 8192}")
        a("s_mov_b32 m0, s5")
        a("buffer_load_dwordx4 v4, s[44:47], s5 offen lds")
    a("v_mov_b32 v5, 0")
    a(f"ds_write_b32 v3, v5 offset:{0}" if False else f"v_add_u32 v6, {HIST}, v3")
    a("ds_write_b32 v6, v5")
    for k in range(5):
        for r in PS[k] + PD[k]:
            a(f"v_mov_b32 v{r}, 0")
    a("s_waitcnt vmcnt(0) lgkmcnt(0)")
    a("s_barrier")
    for k in range(5):
        a(f"v_mul_u32_u24 v6, 6, v{SRC[k]}")
        a(f"v_mul_u32_u24 v7, 6, v{DST[k]}")
        for c in range(3):
            a(f"ds_read_u16_d16_hi v{PS[k][c]}, v6 offset:{2 * c}")
        for c in range(3):
            a(f"ds_read_u16_d16_hi v{PD[k][c]}, v7 offset:{2 * c}")
    REC = [52 + 4 * k for k in range(5)]
    BA = [72 + k for k in range(5)]
    a("v_mov_b32 v5, 1")
    a(f"s_mov_b32 s7, {PHMUL}")
    for k in range(5):
        a(f"s_waitcnt lgkmcnt({max(0, min(15, 6 * (4 - k)))})" if k < 2 else ("s_waitcnt lgkmcnt(0)" if k == 2 else ""))
        x, y, z = PS[k]; t0, t1, t2 = PD[k]
        X, Y, Z = REC[k], REC[k] + 1, REC[k] + 2
        a(f"v_sub_f32 v{x}, v{x}, v{t0}")
        a(f"v_sub_f32 v{y}, v{y}, v{t1}")
        a(f"v_sub_f32 v{z}, v{z}, v{t2}")
        a(f"v_cvt_pk_bf16_f32 v{t0}, v{x}, v{y}")
        a(f"v_cvt_pk_bf16_f32 v{t1}, v{z}, v{z}")
        a(f"v_lshlrev_b32 v{x}, 16, v{t0}")
        a(f"v_and_b32 v{y}, {M}, v{t0}")
        a(f"v_and_b32 v{z}, {M}, v{t1}")
        a(f"v_mul_f32 v{t0}, v{x}, v{x}")
        a(f"v_mul_f32 v{t1}, v{y}, v{y}")
        a(f"v_mul_f32 v{t2}, v{z}, v{z}")
        a(f"v_cvt_pk_bf16_f32 v{t0}, v{t0}, v{t1}")
        a(f"v_cvt_pk_bf16_f32 v{t2}, v{t2}, v{t2}")
        a(f"v_and_b32 v{t1}, {M}, v{t0}")
        a(f"v_lshlrev_b32 v{t0}, 16, v{t0}")
        a(f"v_and_b32 v{t2}, {M}, v{t2}")
        a(f"v_add_f32 v{t0}, v{t0}, v{t1}")
        a(f"v_add_f32 v{t0}, v{t0}, v{t2}")
        a(f"v_cvt_pk_bf16_f32 v{t0}, v{t0}, v{t0}")
        a(f"v_and_b32 v{t0}, {M}, v{t0}")
        a(f"v_add_f32 v{t0}, 0x322bcc77, v{t0}")
        a(f"v_cvt_pk_bf16_f32 v{t0}, v{t0}, v{t0}")
        a(f"v_and_b32 v{t0}, {M}, v{t0}")
        a(f"v_sqrt_f32 v{t0}, v{t0}")
        a(f"v_cvt_pk_bf16_f32 v{t0}, v{t0}, v{t0}")
        a(f"v_and_b32 v{t1}, {M}, v{t0}")
        a(f"v_rcp_f32 v{t1}, v{t1}")
        a(f"v_lshrrev_b32 v{t0}, 16, v{t0}")
        a(f"v_mul_f32 v{x}, v{x}, v{t1}")
        a(f"v_mul_f32 v{y}, v{y}, v{t1}")
        a(f"v_mul_f32 v{z}, v{z}, v{t1}")
        a(f"v_cvt_pk_bf16_f32 v{x}, v{x}, v{y}")
        a(f"v_cvt_pk_bf16_f32 v{z}, v{z}, v{z}")
        a(f"v_cmp_gt_u32 vcc, {DTHR}, v{t0}")
        a(f"v_subrev_u32 v{t0}, {DBASE}, v{t0}")
        a(f"v_lshl_or_b32 v{X}, v{x}, 16, v{t0}")
        a(f"v_mul_u32_u24 v{t1}, s7, v{SRC[k]}")
        a(f"v_lshrrev_b32 v{t1}, 24, v{t1}")
        a(f"v_lshrrev_b32 v{t2}, 8, v{DST[k]}")
        a(f"v_lshl_or_b32 v{t1}, v{t1}, 6, v{t2}")
        a(f"v_and_b32 v{x}, {M}, v{x}")
        a(f"v_or_b32 v{Y}, v{x}, v{t1}")
        a(f"v_and_b32 v{z}, {M}, v{z}")
        a(f"v_or_b32 v{Z}, v{z}, v{SRC[k]}")
        a(f"v_and_b32 v{t2}, 255, v{DST[k]}")
        a(f"v_lshlrev_b32 v{BA[k]}, 2, v{t2}")
        a(f"v_add_u32 v{BA[k]}, {HIST}, v{BA[k]}")
        if k == 4:
            a(f"v_cmp_gt_u32 s[8:9], {CH - 2048}, v0" if False else f"s_movk_i32 s8, {CH - 2048}")
            a("v_cmp_gt_u32 s[10:11], s8, v0")
            a("s_and_b64 vcc, vcc, s[10:11]")
        a(f"s_mov_b64 s[{52 + 2 * k}:{53 + 2 * k}], vcc")
        a("s_mov_b64 exec, vcc")
        a(f"ds_add_rtn_u32 v{REC[k] + 3}, v{BA[k]}, v5")
        a("s_mov_b64 exec, -1")
    a("s_waitcnt lgkmcnt(0)")
    a("s_barrier")
    a(f"v_add_u32 v6, {HIST}, v4")
    a("ds_read_b128 v[20:23], v6")
    a("s_waitcnt lgkmcnt(0)")
    a("v_add_u32 v25, v20, v21")
    a("v_add_u32 v26, v25, v22")
    a("v_add_u32 v27, v26, v23")
    a("v_mov_b32 v28, v27")
    wave_scan(a, 28)
    a("v_sub_u32 v24, v28, v27")
    a("v_add_u32 v27, v24, v26")
    a("v_add_u32 v26, v24, v25")
    a("v_add_u32 v25, v24, v20")
    a("ds_write_b128 v6, v[24:27] offset:1024")
    a("s_cmp_ge_u32 s3, 4")
    a("s_cbranch_scc1 K1_P_NOO")
    for i in range(4):
        a(f"s_cmp_eq_u32 s3, {i}")
        a(f"s_cbranch_scc0 K1_P_O{i}")
        a(f"v_lshl_or_b32 v29, v{20 + i}, 16, v{24 + i}")
        a.label(f"K1_P_O{i}")
    a("v_lshlrev_b32 v30, 12, v2")
    a("s_lshl_b32 s5, s3, 10")
    a("s_lshl_b32 s6, s2, 2")
    a("s_add_u32 s5, s5, s6")
    a(f"s_add_u32 s5, s5, {O_OFF}")
    a("buffer_store_dword v29, v30, s[48:51], s5 offen")
    a.label("K1_P_NOO")
    a("s_waitcnt lgkmcnt(0)")
    for k in range(5):
        a(f"ds_read_b32 v{20 + k}, v{BA[k]} offset:1024")
    a(f"s_mul_i32 s5, s2, {CHSTR}")
    a(f"s_add_u32 s5, s5, {REC_OFF}")
    for k in range(5):
        a(f"s_waitcnt lgkmcnt({4 - k})")
        a(f"v_add_u32 v{20 + k}, v{20 + k}, v{REC[k] + 3}")
        a(f"v_mul_u32_u24 v{20 + k}, 12, v{20 + k}")
        a(f"s_mov_b64 exec, s[{52 + 2 * k}:{53 + 2 * k}]")
        a(f"s_cbranch_execz K1_P_S{k}")
        a(f"buffer_store_dwordx3 v[{REC[k]}:{REC[k] + 2}], v{20 + k}, s[48:51], s5 offen")
        a.label(f"K1_P_S{k}")
        a("s_mov_b64 exec, -1")
    a("s_endpgm")

    a.label("K1_MLP")
    a("v_lshrrev_b32 v3, 4, v2")
    a("v_and_b32 v4, 15, v2")
    a(f"s_sub_u32 s4, s2, {NCH}")
    a("s_lshl_b32 s4, s4, 6")
    a("s_lshr_b32 s5, s3, 1")
    a("s_lshl_b32 s5, s5, 4")
    a("s_add_u32 s4, s4, s5")
    a("s_and_b32 s6, s3, 1")
    a("v_add_u32 v5, s4, v4")
    a("v_lshlrev_b32 v6, 9, v5")
    a("v_lshl_add_u32 v7, v3, 4, v6")
    a("v_lshl_add_u32 v8, v3, 5, v6")
    a("s_lshl_b32 s7, s6, 4")
    a("v_lshlrev_b32 v9, 4, v2")
    a("s_waitcnt lgkmcnt(0)")
    srd(a, 36, 16, 17, N * 512)
    srd(a, 40, 26, 27, 8192)
    srd(a, 44, 28, 29, 24576)
    srd(a, 48, 32, 33, G_BYTES)
    a("s_lshl_b32 s8, s3, 10")
    a("s_mov_b32 m0, s8")
    a("buffer_load_dwordx4 v9, s[40:43], s8 offen lds")
    for k in range(3):
        a(f"s_add_u32 s9, s8, {k * 8192}")
        a(f"s_add_u32 s10, s9, 8192")
        a("s_mov_b32 m0, s10")
        a("buffer_load_dwordx4 v9, s[44:47], s9 offen lds")
    a("buffer_load_dwordx4 v[12:15], v7, s[36:39], 0 offen")
    a("buffer_load_dwordx4 v[16:19], v7, s[36:39], 0 offen offset:64")
    for k in range(3):
        a(f"buffer_load_dwordx4 v[{20 + 4 * k}:{23 + 4 * k}], v8, s[36:39], s7 offen offset:{128 * (k + 1)}")
    a("v_lshrrev_b32 v10, 2, v4")
    a("v_and_b32 v11, 3, v4")
    a("v_lshl_add_u32 v32, v3, 3, v10")
    a("v_lshlrev_b32 v32, 7, v32")
    a("v_lshl_add_u32 v32, v11, 3, v32")
    a("v_lshl_add_u32 v33, v3, 2, v10")
    a("v_mul_u32_u24 v33, 384, v33")
    a("v_lshl_add_u32 v33, v11, 5, v33")
    a("v_add_u32 v33, s7, v33")
    a("v_add_u32 v33, 8192, v33")
    a("v_mul_u32_u24 v34, 640, v5")
    a("v_lshl_add_u32 v34, v3, 4, v34")
    a("s_lshl_b32 s11, s6, 8")
    a("s_lshl_b32 s12, s6, 6")
    a("s_add_u32 s12, s12, 512")
    a("s_waitcnt vmcnt(5)")
    a("s_barrier")
    def f1(t, kb): return 40 + (t * 2 + kb) * 4
    def f2(p, T, kb): return (72 if p < 2 else 40 - 32) + ((p * 2 + T) * 2 + kb) * 4
    def rd2(p):
        for T in range(2):
            for kb in range(2):
                for u in range(2):
                    r = f2(p, T, kb) + 2 * u
                    a(f"ds_read_b64_tr_b16 v[{r}:{r + 1}], v33 offset:{kb * 12288 + u * 6144 + p * 128 + T * 8}")
    for t in range(4):
        for kb in range(2):
            for u in range(2):
                r = f1(t, kb) + 2 * u
                a(f"ds_read_b64_tr_b16 v[{r}:{r + 1}], v32 offset:{kb * 4096 + u * 512 + t * 32}")
    a("s_waitcnt vmcnt(3) lgkmcnt(0)")
    rd2(0); rd2(1)
    D1 = [104 + 4 * t for t in range(4)]
    for t in range(4):
        a(f"v_mfma_f32_16x16x32_bf16 v[{D1[t]}:{D1[t] + 3}], v[{f1(t, 0)}:{f1(t, 0) + 3}], v[12:15], 0")
    for t in range(4):
        a(f"v_mfma_f32_16x16x32_bf16 v[{D1[t]}:{D1[t] + 3}], v[{f1(t, 1)}:{f1(t, 1) + 3}], v[16:19], v[{D1[t]}:{D1[t] + 3}]")
    a("s_nop 7")
    rd2(2)
    for t in range(4):
        for hp in range(2):
            d0, d1 = D1[t] + 2 * hp, D1[t] + 2 * hp + 1
            a(f"v_cvt_pk_bf16_f32 v56, v{d0}, v{d1}")
            a(f"v_lshlrev_b32 v{d0}, 16, v56")
            a(f"v_and_b32 v{d1}, {M}, v56")
            a(f"v_mul_f32 v57, 0xbfb8aa3b, v{d0}")
            a(f"v_mul_f32 v58, 0xbfb8aa3b, v{d1}")
            a("v_exp_f32 v57, v57")
            a("v_exp_f32 v58, v58")
            a("v_add_f32 v57, 1.0, v57")
            a("v_add_f32 v58, 1.0, v58")
            a("v_rcp_f32 v57, v57")
            a("v_rcp_f32 v58, v58")
            a(f"v_mul_f32 v57, v57, v{d0}")
            a(f"v_mul_f32 v58, v58, v{d1}")
            a(f"v_cvt_pk_bf16_f32 v{12 + 2 * t + hp}, v57, v58")
    a("s_waitcnt lgkmcnt(0)")
    def D2(p, T): return 104 + (p * 2 + T) * 4
    for kb in range(2):
        for p in range(3):
            for T in range(2):
                d = D2(p, T)
                c = "0" if kb == 0 else f"v[{d}:{d + 3}]"
                a(f"v_mfma_f32_16x16x32_bf16 v[{d}:{d + 3}], v[{f2(p, T, kb)}:{f2(p, T, kb) + 3}], v[{12 + 4 * kb}:{15 + 4 * kb}], {c}")
    a("s_waitcnt vmcnt(0)")
    for q in range(4):
        T, hp = q >> 1, q & 1
        A = 56 + 4 * q
        a(f"v_cvt_pk_bf16_f32 v{A + 3}, v{D2(0, T) + 2 * hp}, v{D2(0, T) + 2 * hp + 1}")
        a(f"v_cvt_pk_bf16_f32 v76, v{D2(1, T) + 2 * hp}, v{D2(1, T) + 2 * hp + 1}")
        a(f"v_cvt_pk_bf16_f32 v{72 + q}, v{D2(2, T) + 2 * hp}, v{D2(2, T) + 2 * hp + 1}")
        a("v_lshlrev_b32 v77, 16, v76")
        a(f"v_and_b32 v76, {M}, v76")
        for k in range(3):
            vv = 20 + 4 * k + q
            a(f"v_lshlrev_b32 v78, 16, v{vv}")
            a(f"v_and_b32 v79, {M}, v{vv}")
            a("v_mul_f32 v78, v78, v77")
            a("v_mul_f32 v79, v79, v76")
            a(f"v_cvt_pk_bf16_f32 v{A + k}, v78, v79")
        a(f"buffer_store_dwordx4 v[{A}:{A + 3}], v34, s[48:51], s11 offen offset:{64 * q}")
    a("buffer_store_dwordx4 v[72:75], v34, s[48:51], s12 offen")
    a("s_endpgm")

    a.label("K1_TAB")
    a(f"s_sub_u32 s4, s2, {NCH + NMLP}")
    a("s_lshl_b32 s4, s4, 9")
    a("v_add_u32 v3, s4, v0")
    a("v_and_b32 v4, 7, v3")
    a("v_lshlrev_b32 v4, 2, v4")
    a("s_waitcnt lgkmcnt(0)")
    srd(a, 36, 24, 25, 32)
    srd(a, 48, 32, 33, WS_USED)
    a("buffer_load_dword v5, v4, s[36:39], 0 offen")
    a("v_lshrrev_b32 v6, 3, v3")
    a(f"v_add_u32 v7, {DBASE}, v6")
    a("v_lshlrev_b32 v7, 16, v7")
    a("v_rcp_f32 v8, v7")
    a("v_mul_f32 v9, 0x40490fdb, v7")
    a("v_cvt_pk_bf16_f32 v9, v9, v9")
    a(f"v_and_b32 v9, {M}, v9")
    a("v_mul_f32 v9, 0x3e4ccccd, v9")
    a("v_cvt_pk_bf16_f32 v9, v9, v9")
    a(f"v_and_b32 v9, {M}, v9")
    a("v_mul_f32 v9, 0.15915494, v9")
    a("v_cos_f32 v9, v9")
    a("v_cvt_pk_bf16_f32 v9, v9, v9")
    a(f"v_and_b32 v9, {M}, v9")
    a("v_add_f32 v9, 1.0, v9")
    a("v_cvt_pk_bf16_f32 v9, v9, v9")
    a(f"v_and_b32 v9, {M}, v9")
    a("v_mul_f32 v9, 0.5, v9")
    a("v_cmp_lt_u32 vcc, 1, v6")
    a(f"s_movk_i32 s5, {DTHR - DBASE}")
    a("v_cmp_gt_u32 s[6:7], s5, v6")
    a("s_and_b64 vcc, vcc, s[6:7]")
    a("v_cndmask_b32 v9, 0, v9, vcc")
    a("s_waitcnt vmcnt(0)")
    a("v_lshlrev_b32 v10, 16, v5")
    a(f"v_and_b32 v11, {M}, v5")
    a("v_mul_f32 v10, v10, v7")
    a("v_mul_f32 v11, v11, v7")
    a("v_cvt_pk_bf16_f32 v10, v10, v11")
    a(f"v_and_b32 v11, {M}, v10")
    a("v_lshlrev_b32 v10, 16, v10")
    a("v_mul_f32 v10, 0.15915494, v10")
    a("v_mul_f32 v11, 0.15915494, v11")
    a("v_fract_f32 v10, v10")
    a("v_fract_f32 v11, v11")
    a("v_sin_f32 v10, v10")
    a("v_sin_f32 v11, v11")
    a("v_cvt_pk_bf16_f32 v10, v10, v11")
    a(f"v_and_b32 v11, {M}, v10")
    a("v_lshlrev_b32 v10, 16, v10")
    a("v_mul_f32 v10, v10, v8")
    a("v_mul_f32 v11, v11, v8")
    a("v_cvt_pk_bf16_f32 v10, v10, v11")
    a(f"v_and_b32 v11, {M}, v10")
    a("v_lshlrev_b32 v10, 16, v10")
    a("v_mul_f32 v10, v10, v9")
    a("v_mul_f32 v11, v11, v9")
    a("v_cvt_pk_bf16_f32 v10, v10, v11")
    a("v_lshlrev_b32 v3, 2, v3")
    a(f"s_mov_b32 s5, {RT_OFF}")
    a("buffer_store_dword v10, v3, s[48:51], s5 offen")
    a.label("K1_END")
    a("s_endpgm")

def k2(a):
    W = [160 + 16 * i for i in range(6)]
    GA = [96 + 4 * i for i in range(8)]
    GB = [128 + i for i in range(8)]
    RR = [64 + 4 * i for i in range(8)]
    BF = [136 + 4 * i for i in range(6)]
    AF = 60
    ACC = list(range(48, 56))
    vL16, vBD, vFL, vRH, vAS, vTH = 2, 3, 4, 5, 6, 7
    vRC, vRN = 8, 9
    vONE, vCTR = 10, 11
    T = list(range(12, 24))
    a.label('painn_msg_kernel')
    a(f"s_cmp_ge_u32 s2, {NBIN}")
    a("s_cbranch_scc1 K2_END")
    a("s_load_dwordx2 s[16:17], s[0:1], 0")
    a("s_load_dwordx4 s[20:23], s[0:1], 56")
    a("s_load_dwordx2 s[24:25], s[0:1], 80")
    a("v_lshrrev_b32 v24, 6, v0")
    a("v_and_b32 v1, 63, v0")
    a("v_readfirstlane_b32 s3, v24")
    a("v_lshrrev_b32 v25, 3, v0")
    a("v_lshlrev_b32 v26, 2, v25")
    a("v_lshlrev_b32 v27, 4, v1")
    a("s_lshl_b32 s4, s2, 10")
    a(f"s_add_u32 s4, s4, {O_OFF}")
    a("s_waitcnt lgkmcnt(0)")
    srd(a, 36, 24, 25, WS_USED)
    srd(a, 40, 24, 25, G_BYTES)
    srd(a, 44, 16, 17, N * 512)
    srd(a, 48, 22, 23, N * 512)
    srd(a, 52, 20, 21, 16 * 384)
    OO = [28, 29, 30, 31]
    for u in range(4):
        a(f"buffer_load_dword v{OO[u]}, v26, s[36:39], s4 offen offset:{256 * u}")
    a("buffer_load_dwordx4 v[32:35], v27, s[36:39], s4 offen")
    a("s_lshl_b32 s6, s3, 10")
    for k in range(8):
        a(f"s_add_u32 s5, s6, {k * 8192 + L_RT}")
        a("s_mov_b32 m0, s5")
        a(f"s_add_u32 s5, s6, {k * 8192 + RT_OFF}")
        a("buffer_load_dwordx4 v27, s[36:39], s5 offen lds")
    a("v_lshrrev_b32 v36, 5, v0")
    a("v_lshlrev_b32 v36, 17, v36")
    a("v_and_b32 v37, 31, v0")
    a("v_lshl_add_u32 v36, v37, 4, v36")
    a("s_lshl_b32 s7, s2, 9")
    for u in range(3):
        a(f"s_add_u32 s5, s7, {u * 16 * 131072}")
        a(f"buffer_load_dwordx4 v[{96 + 4 * u}:{99 + 4 * u}], v36, s[44:47], s5 offen")
    a("v_and_b32 v38, 31, v1")
    a("v_lshrrev_b32 v39, 5, v1")
    a("v_and_b32 v40, 3, v38")
    a("v_lshrrev_b32 v41, 2, v38")
    a("v_lshl_add_u32 v42, v40, 3, v41")
    a("v_lshlrev_b32 v43, 2, v42")
    a("v_mul_u32_u24 v44, 3072, v39")
    a("v_add_u32 v44, v44, v43")
    for p in range(3):
        for e in range(8):
            a(f"buffer_load_dword v{160 + 8 * p + e}, v44, s[52:55], 0 offen offset:{e * 384 + p * 128}")
    NLATE = 8 + 3 + 24
    a(f"v_lshlrev_b32 v{vL16}, 4, v38")
    a("v_lshrrev_b32 v45, 2, v41")
    a("v_and_b32 v46, 3, v41")
    a("v_lshl_add_u32 v46, v40, 2, v46")
    a("v_lshl_add_u32 v46, v45, 4, v46")
    a("v_lshlrev_b32 v46, 2, v46")
    a("v_add_u32 v46, 512, v46")
    a(f"v_sub_u32 v{vBD}, v46, v{vL16}")
    a(f"v_add_u32 v{vFL}, {L_ACC}, v43")
    a(f"v_lshlrev_b32 v{vRH}, 8, v39")
    a(f"v_add_u32 v{vRH}, {L_REC}, v{vRH}")
    a("v_and_b32 v45, 1, v41")
    a("v_lshrrev_b32 v46, 3, v38")
    a("v_lshl_add_u32 v46, v46, 2, v40")
    a("v_lshl_add_u32 v46, v45, 4, v46")
    a("v_lshlrev_b32 v46, 4, v46")
    a(f"v_add_u32 v{vAS}, {L_REC}, v46")
    a(f"v_lshlrev_b32 v{vTH}, 4, v39")
    a(f"v_mov_b32 v{vONE}, 1")
    a(f"v_mov_b32 v{vCTR}, {L_CTR}")
    for k in ACC: a(f"v_mov_b32 v{k}, 0")
    a("v_and_b32 v47, 7, v0")
    a(f"v_mul_u32_u24 v56, {CHSTR}, v25")
    a(f"s_waitcnt vmcnt({NLATE})")
    a("v_lshrrev_b32 v32, 16, v32")
    a("v_lshrrev_b32 v33, 16, v33")
    a("v_lshrrev_b32 v34, 16, v34")
    a("v_lshrrev_b32 v35, 16, v35")
    a("v_max3_u32 v57, v32, v33, v34")
    a("v_max_u32 v57, v57, v35")
    a("v_add3_u32 v58, v32, v33, v34")
    a("v_add_u32 v58, v58, v35")
    wave_max(a, 57)
    wave_scan(a, 58)
    a("v_readlane_b32 s8, v57, 63")
    a("v_readlane_b32 s9, v58, 63")
    a("s_mov_b32 s10, 24")
    a(f"s_cmp_gt_u32 s9, {CAP}")
    a("s_cselect_b32 s10, 8, s10")
    a("s_mov_b32 s11, 0")
    a("s_mov_b32 s12, 1")
    a.label("K2_ROUND")
    a("v_lshlrev_b32 v12, 2, v0")
    a(f"v_add_u32 v12, {L_HIST}, v12")
    a("v_mov_b32 v13, 0")
    a("ds_write_b32 v12, v13")
    a("v_mov_b32 v13, 8")
    a(f"ds_write_b32 v{vCTR}, v13")
    def RL(u, z): return 184 + 4 * (u * 3 + z)
    def MK(u, z): return 56 + 2 * (u * 3 + z)
    a("v_add_u32 v14, s11, v47")
    for u in range(4):
        a(f"v_lshrrev_b32 v15, 16, v{OO[u]}")
        a(f"v_and_b32 v16, 0xffff, v{OO[u]}")
        a("v_add_u32 v16, v16, v14")
        a("v_mad_u32_u24 v16, v16, 12, v56")
        a(f"s_mov_b32 s5, {REC_OFF + u * 64 * CHSTR}")
        for z in range(3):
            a(f"v_add_u32 v17, {8 * z}, v14")
            a(f"v_cmp_lt_u32 s[{MK(u, z)}:{MK(u, z) + 1}], v17, v15")
            if z > 0:
                a(f"s_cmp_gt_u32 s10, {8 * z}")
                a(f"s_cselect_b64 s[{MK(u, z)}:{MK(u, z) + 1}], s[{MK(u, z)}:{MK(u, z) + 1}], 0")
            a(f"s_mov_b64 exec, s[{MK(u, z)}:{MK(u, z) + 1}]")
            a(f"s_cbranch_execz K2_L{u}_{z}")
            a(f"buffer_load_dwordx3 v[{RL(u, z)}:{RL(u, z) + 2}], v16, s[36:39], s5 offen offset:{96 * z}")
            a.label(f"K2_L{u}_{z}")
            a("s_mov_b64 exec, -1")
    a("s_waitcnt lgkmcnt(0)")
    a("s_barrier")
    a("s_waitcnt vmcnt(0)")
    a("s_cmp_eq_u32 s12, 0")
    a("s_cbranch_scc1 K2_NOINIT")
    a("s_mov_b32 s5, 0x05040100")
    a("s_mov_b32 s6, 0x07060302")
    for p in range(3):
        for e2 in range(4):
            lo, hi = 160 + 8 * p + 2 * e2, 160 + 8 * p + 2 * e2 + 1
            a(f"v_perm_b32 v{BF[2 * p] + e2}, v{hi}, v{lo}, s5")
            a(f"v_perm_b32 v{BF[2 * p + 1] + e2}, v{hi}, v{lo}, s6")
    a("v_lshrrev_b32 v12, 3, v0")
    a("v_lshlrev_b32 v12, 8, v12")
    a("v_lshl_add_u32 v12, v47, 4, v12")
    a(f"v_add_u32 v12, {L_ACC}, v12")
    for u in range(3):
        if u == 2:
            a("s_cmp_ge_u32 s3, 4")
            a("s_cbranch_scc1 K2_NOINIT")
        for j in range(4):
            a(f"v_lshlrev_b32 v{108 + j}, 16, v{96 + 4 * u + j}")
            a(f"v_and_b32 v{112 + j}, {M}, v{96 + 4 * u + j}")
        a(f"ds_write_b128 v12, v[108:111] offset:{u * 16384}")
        a(f"ds_write_b128 v12, v[112:115] offset:{u * 16384 + 128}")
    a.label("K2_NOINIT")
    for u in range(4):
        for z in range(3):
            r = RL(u, z)
            a(f"s_mov_b64 exec, s[{MK(u, z)}:{MK(u, z) + 1}]")
            a(f"s_cbranch_execz K2_H{u}_{z}")
            a(f"v_and_b32 v12, 0xffff, v{r + 1}")
            a(f"v_lshlrev_b32 v12, 2, v12")
            a(f"v_add_u32 v12, {L_HIST}, v12")
            a(f"ds_add_rtn_u32 v{r + 3}, v12, v{vONE}")
            a.label(f"K2_H{u}_{z}")
    a("s_mov_b64 exec, -1")
    a("s_waitcnt lgkmcnt(0)")
    a("s_barrier")
    a(f"v_add_u32 v12, {L_HIST}, v27")
    a("ds_read_b128 v[16:19], v12")
    a("s_waitcnt lgkmcnt(0)")
    a("v_add_u32 v21, v16, v17")
    a("v_add_u32 v22, v21, v18")
    a("v_add_u32 v23, v22, v19")
    a("v_mov_b32 v13, v23")
    wave_scan(a, 13)
    a("v_sub_u32 v20, v13, v23")
    a("v_add_u32 v23, v20, v22")
    a("v_add_u32 v22, v20, v21")
    a("v_add_u32 v21, v20, v16")
    a(f"ds_write_b128 v12, v[20:23] offset:{NKEY * 4}")
    a("v_readlane_b32 s13, v13, 63")
    a("v_add_u32 v14, s13, v38")
    a("v_lshlrev_b32 v14, 4, v14")
    a(f"v_add_u32 v14, {L_REC}, v14")
    a("v_mov_b32 v16, 0")
    a("v_mov_b32 v17, 0")
    a("v_mov_b32 v18, 0")
    a("v_mov_b32 v19, 0x7f000000")
    a("ds_write_b128 v14, v[16:19]")
    a("s_add_u32 s14, s13, 31")
    a("s_lshr_b32 s14, s14, 5")
    a("s_waitcnt lgkmcnt(0)")
    a("s_movk_i32 s5, 640")
    for u in range(4):
        for z in range(3):
            r = RL(u, z)
            a(f"s_mov_b64 exec, s[{MK(u, z)}:{MK(u, z) + 1}]")
            a(f"s_cbranch_execz K2_S{u}_{z}")
            a(f"v_and_b32 v12, 0xffff, v{r + 1}")
            a(f"v_lshlrev_b32 v12, 2, v12")
            a(f"v_add_u32 v12, {L_START}, v12")
            a(f"ds_read_b32 v12, v12")
            a(f"v_and_b32 v13, 0xffff, v{r + 2}")
            a(f"v_and_b32 v{r + 2}, {M}, v{r + 2}")
            a("s_waitcnt lgkmcnt(0)")
            a(f"v_add_u32 v12, v12, v{r + 3}")
            a(f"v_mul_u32_u24 v{r + 3}, s5, v13")
            a(f"v_lshlrev_b32 v12, 4, v12")
            a(f"v_add_u32 v12, {L_REC}, v12")
            a(f"ds_write_b128 v12, v[{r}:{r + 3}]")
            a.label(f"K2_S{u}_{z}")
    a("s_mov_b64 exec, -1")
    a("s_waitcnt lgkmcnt(0)")
    a("s_barrier")
    a("s_mov_b32 s15, s3")
    a("s_cmp_ge_u32 s15, s14")
    a("s_cbranch_scc1 K2_DONE")
    a("s_lshl_b32 s5, s15, 9")
    a(f"v_add_u32 v{vRC}, s5, v{vRH}")
    a(f"v_add_u32 v{T[0]}, s5, v{vAS}")
    for t in range(8):
        a(f"ds_read_b128 v[{RR[t]}:{RR[t] + 3}], v{vRC} offset:{16 * t}")
    a(f"ds_read_b64 v[{T[2]}:{T[3]}], v{T[0]}")
    a(f"ds_read_b32 v{T[4]}, v{T[0]} offset:20")
    def issue(s):
        a(f"v_add_u32 v{RR[s] + 3}, v{RR[s] + 3}, v{vL16}")
        a(f"v_add_u32 v{T[11]}, v{RR[s] + 3}, v{vBD}")
        a(f"buffer_load_dwordx4 v[{GA[s]}:{GA[s] + 3}], v{RR[s] + 3}, s[40:43], 0 offen")
        a(f"buffer_load_dword v{GB[s]}, v{T[11]}, s[40:43], 0 offen")
    for t in range(7):
        a(f"s_waitcnt lgkmcnt({9 - t})")
        issue(t)
    a("s_waitcnt lgkmcnt(0)")
    a(f"v_cmp_ne_u16 s[28:29], v{T[3]}, v{T[4]}")
    a(f"v_mad_u32_u16 v{T[2]}, v{T[2]}, 32, v{vTH}")
    a(f"ds_read_b128 v[{AF}:{AF + 3}], v{T[2]} offset:{L_RT}")
    flush_blocks = []
    def flush_code(t, both):
        s = t % 8
        a(f"v_and_b32 v{T[10]}, 63, v{RR[s] + 1}")
        a(f"v_lshl_add_u32 v{T[10]}, v{T[10]}, 10, v{vFL}")
        for k in range(8):
            a(f"ds_add_f32 v{T[10]}, v{ACC[k]} offset:{128 * k}")
        for k in range(8):
            a(f"v_mov_b32 v{ACC[k]}, 0")
    def step(t, last, tag):
        s = t % 8
        younger = min(6, 15 - t) if last else 6
        a(f"s_waitcnt vmcnt({2 * younger})")
        g = GA[s]; b = GB[s]; rx, ry, rz = RR[s], RR[s] + 1, RR[s] + 2
        e = T[0:5]
        We = [W[0] + t, W[2] + t, W[4] + t]; Wo = [W[1] + t, W[3] + t, W[5] + t]
        for j in range(4): a(f"v_lshlrev_b32 v{e[j]}, 16, v{g + j}")
        a(f"v_lshlrev_b32 v{e[4]}, 16, v{b}")
        for j in range(4): a(f"v_and_b32 v{g + j}, {M}, v{g + j}")
        a(f"v_and_b32 v{b}, {M}, v{b}")
        a(f"v_mul_f32 v{e[4]}, v{e[4]}, v{We[2]}")
        a(f"v_mul_f32 v{b}, v{b}, v{Wo[2]}")
        for k in range(3):
            a(f"v_fmac_f32 v{ACC[2 * (k + 1)]}, v{e[k]}, v{We[1]}")
            a(f"v_fmac_f32 v{ACC[2 * (k + 1) + 1]}, v{g + k}, v{Wo[1]}")
        a(f"v_fmac_f32 v{ACC[0]}, v{e[3]}, v{We[0]}")
        a(f"v_fmac_f32 v{ACC[1]}, v{g + 3}, v{Wo[0]}")
        for k in range(3):
            a(f"v_fmac_f32 v{ACC[2 * (k + 1)]}, v{e[4]}, v{RR[s] + k}")
            a(f"v_fmac_f32 v{ACC[2 * (k + 1) + 1]}, v{b}, v{RR[s] + k}")
        if t == 15:
            flush_code(t, True)
        else:
            m0 = 8 * (t // 4) + t % 4
            a(f"s_and_b32 s5, s26, {(1 << m0) | (1 << (m0 + 4)):#x}")
            a(f"s_cbranch_scc1 K2_FL{tag}{t}")
            a.label(f"K2_FR{tag}{t}")
            flush_blocks.append((t, tag))
        if not (last and t >= 8):
            base = vRC if t < 8 else vRN
            a(f"ds_read_b128 v[{RR[s]}:{RR[s] + 3}], v{base} offset:{16 * ((t + 8) % 16)}")
            if not (last and t >= 9):
                a("s_waitcnt lgkmcnt(1)")
                issue((t + 7) % 8)
        elif t == 8:
            a("s_waitcnt lgkmcnt(0)")
            issue((t + 7) % 8)
    a.label("K2_BATCH")
    a("s_mov_b32 s26, s28")
    a("s_mov_b64 exec, 1")
    a(f"ds_add_rtn_u32 v{T[9]}, v{vCTR}, v{vONE}")
    a("s_mov_b64 exec, -1")
    a("s_waitcnt lgkmcnt(1)")
    for i in (4, 5, 2, 3, 0, 1):
        a(f"v_mfma_f32_32x32x16_bf16 v[{W[i]}:{W[i] + 15}], v[{AF}:{AF + 3}], v[{BF[i]}:{BF[i] + 3}], 0")
    a("s_waitcnt lgkmcnt(0)")
    a(f"v_readfirstlane_b32 s27, v{T[9]}")
    a("s_lshl_b32 s5, s27, 9")
    a(f"s_min_u32 s5, s5, {CAP * 16}")
    a(f"v_add_u32 v{vRN}, s5, v{vRH}")
    a(f"v_add_u32 v{T[5]}, s5, v{vAS}")
    a(f"ds_read_b64 v[{T[6]}:{T[7]}], v{T[5]}")
    a(f"ds_read_b32 v{T[8]}, v{T[5]} offset:20")
    a("s_nop 7")
    for t in range(8):
        step(t, False, 'A')
        if t == 1:
            a(f"v_cmp_ne_u16 s[28:29], v{T[7]}, v{T[8]}")
            a(f"v_and_b32 v{T[6]}, 0x7ff, v{T[6]}")
            a(f"v_mad_u32_u16 v{T[6]}, v{T[6]}, 32, v{vTH}")
            a(f"ds_read_b128 v[{AF}:{AF + 3}], v{T[6]} offset:{L_RT}")
    a("s_cmp_ge_u32 s27, s14")
    a("s_cbranch_scc1 K2_LAST")
    for t in range(8, 16):
        step(t, False, 'A')
    a(f"v_mov_b32 v{vRC}, v{vRN}")
    a("s_branch K2_BATCH")
    a.label("K2_LAST")
    for t in range(8, 16):
        step(t, True, 'B')
    a.label("K2_DONE")
    a("s_waitcnt lgkmcnt(0)")
    a("s_barrier")
    a("s_add_u32 s11, s11, s10")
    a("s_mov_b32 s12, 0")
    a("s_cmp_lt_u32 s11, s8")
    a("s_cbranch_scc1 K2_ROUND")
    a("v_lshrrev_b32 v12, 3, v0")
    a("v_lshlrev_b32 v12, 8, v12")
    a("v_lshl_add_u32 v12, v47, 4, v12")
    a(f"v_add_u32 v12, {L_ACC}, v12")
    for u in range(3):
        if u == 2:
            a("s_cmp_ge_u32 s3, 4")
            a("s_cbranch_scc1 K2_END")
        a(f"ds_read_b128 v[64:67], v12 offset:{u * 16384}")
        a(f"ds_read_b128 v[68:71], v12 offset:{u * 16384 + 128}")
        a(f"s_add_u32 s5, s7, {u * 16 * 131072}")
        a("s_waitcnt lgkmcnt(0)")
        for j in range(4):
            a(f"v_cvt_pk_bf16_f32 v{72 + 4 * u + j}, v{64 + j}, v{68 + j}")
        a(f"buffer_store_dwordx4 v[{72 + 4 * u}:{75 + 4 * u}], v36, s[48:51], s5 offen")
    a.label("K2_END")
    a("s_endpgm")
    for t, tag in flush_blocks:
        m0 = 8 * (t // 4) + t % 4
        a.label(f"K2_FL{tag}{t}")
        a(f"s_bitcmp1_b32 s26, {m0}")
        a("s_cselect_b32 exec_lo, -1, 0")
        a(f"s_bitcmp1_b32 s26, {m0 + 4}")
        a("s_cselect_b32 exec_hi, -1, 0")
        flush_code(t, False)
        a("s_mov_b64 exec, -1")
        a(f"s_branch K2_FR{tag}{t}")

def kd(name, vgpr, sgpr):
    return f""".amdhsa_kernel {name}
  .amdhsa_next_free_vgpr {vgpr}
  .amdhsa_next_free_sgpr {sgpr}
  .amdhsa_accum_offset {(vgpr + 3) // 4 * 4}
  .amdhsa_group_segment_fixed_size 0
  .amdhsa_kernarg_size 88
  .amdhsa_user_sgpr_count 2
  .amdhsa_user_sgpr_kernarg_segment_ptr 1
  .amdhsa_system_sgpr_workgroup_id_x 1
.end_amdhsa_kernel
"""

def main():
    ref = open('gather_scatter__molecular_angular_painn__graph.s.ref').read().split('\n')
    head = [l for l in ref if l.startswith(';') and '@launch' not in l and 'Override launch' not in l and 'grid=ceil' not in l]
    out = '\n'.join(head) + '\n'
    out += f"; @launch kernel=painn_prep_kernel grid=({K1_GRID},1,1) block=(512,1,1) lds={K1_LDS}\n"
    out += f"; @launch kernel=painn_msg_kernel grid=({NBIN},1,1) block=(512,1,1) lds={K2_LDS}\n"
    out += '.amdgcn_target "amdgcn-amd-amdhsa--gfx950"\n.text\n'
    for name, fn in (('painn_prep_kernel', k1), ('painn_msg_kernel', k2)):
        a = Asm(); fn(a)
        out += f".globl {name}\n.p2align 8\n.type {name},@function\n" + a.padded(verbose=True)
    out += '.section .rodata,"a"\n.p2align 6\n' + kd('painn_prep_kernel', 128, 80) + '.p2align 6\n' + kd('painn_msg_kernel', 256, 96)
    open(sys.argv[1], 'w').write(out)
    print('K2_LDS', K2_LDS, 'K1 grid', K1_GRID)

main()
```

```python
import sys
from asmlib import Asm

N = 10000; E = 640000
NCH = 256
CH = E // NCH
NBIN = 256
P = 4
NKEY = P * 64
CHSTR = 30720
G_BYTES = N * 640
REC_OFF = 8 << 20
O_OFF = 16 << 20
RT_OFF = 17 << 20
WS_USED = 18 << 20
DBASE = 0x38d0
DTHR = 0x409d
NMLP = (N + 63) // 64
NTAB = 32
K1_GRID = NCH + NMLP + NTAB
K1_LDS = 65536 + 2048
L_RT = 0
L_ACC = 65536
CAP = 3072
L_REC = L_ACC + 40 * 1024
L_HIST = L_REC + (CAP + 32) * 16
L_START = L_HIST + NKEY * 4
L_CTR = L_START + NKEY * 4
K2_LDS = L_CTR + 64
PHMUL = (1 << 24) * P // N + 1

OPT = dict(a.split('=') for a in sys.argv[2:])
def opt(k, d): return type(d)(OPT.get(k, d))

def srd(a, d, lo, hi, nbytes):
    a(f"s_mov_b32 s{d}, s{lo}")
    a(f"s_and_b32 s{d+1}, s{hi}, 0xffff")
    a(f"s_mov_b32 s{d+2}, {nbytes}")
    a(f"s_mov_b32 s{d+3}, 0x00020000")

def wave_scan(a, x):
    for sh in (1, 2, 4, 8):
        a(f"v_add_u32_dpp v{x}, v{x}, v{x} row_shr:{sh} row_mask:0xf bank_mask:0xf bound_ctrl:0")
    a(f"v_add_u32_dpp v{x}, v{x}, v{x} row_bcast:15 row_mask:0xa bank_mask:0xf")
    a(f"v_add_u32_dpp v{x}, v{x}, v{x} row_bcast:31 row_mask:0xc bank_mask:0xf")

def wave_max(a, x):
    for sh in (1, 2, 4, 8):
        a(f"v_max_u32_dpp v{x}, v{x}, v{x} row_shr:{sh} row_mask:0xf bank_mask:0xf bound_ctrl:0")
    a(f"v_max_u32_dpp v{x}, v{x}, v{x} row_bcast:15 row_mask:0xa bank_mask:0xf")
    a(f"v_max_u32_dpp v{x}, v{x}, v{x} row_bcast:31 row_mask:0xc bank_mask:0xf")

M = '0xffff0000'
PROF = opt('prof', 0)
PROF_OFF = (17 << 20) + (256 << 10)
def stamp(a, i):
    if PROF:
        a(f"s_memrealtime s[{80 + 2 * i}:{81 + 2 * i}]")
        a("s_waitcnt lgkmcnt(0)")
def stamp_store(a, n, wsrd, kern):
    if PROF:
        a("s_mov_b64 exec, 1")
        a("s_lshl_b32 s5, s2, 3")
        a("s_add_u32 s5, s5, s3")
        a("s_lshl_b32 s5, s5, 5")
        a(f"s_add_u32 s5, s5, {PROF_OFF + kern * 131072}")
        a("v_mov_b32 v12, 0")
        for i in range(n):
            a(f"v_mov_b32 v13, s{80 + 2 * i}")
            a(f"buffer_store_dword v13, v12, s[{wsrd}:{wsrd + 3}], s5 offen offset:{4 * i}")
        a("s_mov_b64 exec, -1")

def k1(a):
    a.label('painn_prep_kernel')
    a(f"s_cmp_ge_u32 s2, {K1_GRID}")
    a("s_cbranch_scc1 K1_END")
    a("s_load_dwordx16 s[16:31], s[0:1], 0")
    a("s_load_dwordx2 s[32:33], s[0:1], 80")
    a("v_lshrrev_b32 v1, 6, v0")
    a("v_and_b32 v2, 63, v0")
    a("v_readfirstlane_b32 s3, v1")
    a(f"s_cmp_ge_u32 s2, {NCH + NMLP}")
    a("s_cbranch_scc1 K1_TAB")
    a(f"s_cmp_ge_u32 s2, {NCH}")
    a("s_cbranch_scc1 K1_MLP")
    HIST = 65536; START = 65536 + 1024
    SRC = list(range(8, 13)); DST = list(range(13, 18))
    PS = [list(range(20 + 6 * k, 23 + 6 * k)) for k in range(5)]
    PD = [list(range(23 + 6 * k, 26 + 6 * k)) for k in range(5)]
    a("v_lshlrev_b32 v3, 2, v0")
    a("v_lshlrev_b32 v4, 4, v2")
    a(f"s_mul_i32 s4, s2, {CH * 4}")
    a("s_waitcnt lgkmcnt(0)")
    srd(a, 36, 20, 21, E * 4)
    srd(a, 40, 22, 23, E * 4)
    srd(a, 44, 18, 19, N * 6)
    srd(a, 48, 32, 33, WS_USED)
    for k in range(5):
        a(f"s_add_u32 s5, s4, {k * 2048}")
        a(f"buffer_load_dword v{SRC[k]}, v3, s[36:39], s5 offen")
        a(f"buffer_load_dword v{DST[k]}, v3, s[40:43], s5 offen")
    a("s_lshl_b32 s6, s3, 10")
    for k in range(8):
        a(f"s_add_u32 s5, s6, {k * 8192}")
        a("s_mov_b32 m0, s5")
        a("buffer_load_dwordx4 v4, s[44:47], s5 offen lds")
    a("v_mov_b32 v5, 0")
    a(f"ds_write_b32 v3, v5 offset:{0}" if False else f"v_add_u32 v6, {HIST}, v3")
    a("ds_write_b32 v6, v5")
    for k in range(5):
        for r in PS[k] + PD[k]:
            a(f"v_mov_b32 v{r}, 0")
    a("s_waitcnt vmcnt(0) lgkmcnt(0)")
    a("s_barrier")
    for k in range(5):
        a(f"v_mul_u32_u24 v6, 6, v{SRC[k]}")
        a(f"v_mul_u32_u24 v7, 6, v{DST[k]}")
        for c in range(3):
            a(f"ds_read_u16_d16_hi v{PS[k][c]}, v6 offset:{2 * c}")
        for c in range(3):
            a(f"ds_read_u16_d16_hi v{PD[k][c]}, v7 offset:{2 * c}")
    REC = [52 + 4 * k for k in range(5)]
    BA = [72 + k for k in range(5)]
    a("v_mov_b32 v5, 1")
    a(f"s_mov_b32 s7, {PHMUL}")
    for k in range(5):
        a(f"s_waitcnt lgkmcnt({max(0, min(15, 6 * (4 - k)))})" if k < 2 else ("s_waitcnt lgkmcnt(0)" if k == 2 else ""))
        x, y, z = PS[k]; t0, t1, t2 = PD[k]
        X, Y, Z = REC[k], REC[k] + 1, REC[k] + 2
        a(f"v_sub_f32 v{x}, v{x}, v{t0}")
        a(f"v_sub_f32 v{y}, v{y}, v{t1}")
        a(f"v_sub_f32 v{z}, v{z}, v{t2}")
        a(f"v_cvt_pk_bf16_f32 v{t0}, v{x}, v{y}")
        a(f"v_cvt_pk_bf16_f32 v{t1}, v{z}, v{z}")
        a(f"v_lshlrev_b32 v{x}, 16, v{t0}")
        a(f"v_and_b32 v{y}, {M}, v{t0}")
        a(f"v_and_b32 v{z}, {M}, v{t1}")
        a(f"v_mul_f32 v{t0}, v{x}, v{x}")
        a(f"v_mul_f32 v{t1}, v{y}, v{y}")
        a(f"v_mul_f32 v{t2}, v{z}, v{z}")
        a(f"v_cvt_pk_bf16_f32 v{t0}, v{t0}, v{t1}")
        a(f"v_cvt_pk_bf16_f32 v{t2}, v{t2}, v{t2}")
        a(f"v_and_b32 v{t1}, {M}, v{t0}")
        a(f"v_lshlrev_b32 v{t0}, 16, v{t0}")
        a(f"v_and_b32 v{t2}, {M}, v{t2}")
        a(f"v_add_f32 v{t0}, v{t0}, v{t1}")
        a(f"v_add_f32 v{t0}, v{t0}, v{t2}")
        a(f"v_cvt_pk_bf16_f32 v{t0}, v{t0}, v{t0}")
        a(f"v_and_b32 v{t0}, {M}, v{t0}")
        a(f"v_add_f32 v{t0}, 0x322bcc77, v{t0}")
        a(f"v_cvt_pk_bf16_f32 v{t0}, v{t0}, v{t0}")
        a(f"v_and_b32 v{t0}, {M}, v{t0}")
        a(f"v_sqrt_f32 v{t0}, v{t0}")
        a(f"v_cvt_pk_bf16_f32 v{t0}, v{t0}, v{t0}")
        a(f"v_and_b32 v{t1}, {M}, v{t0}")
        a(f"v_rcp_f32 v{t1}, v{t1}")
        a(f"v_lshrrev_b32 v{t0}, 16, v{t0}")
        a(f"v_mul_f32 v{x}, v{x}, v{t1}")
        a(f"v_mul_f32 v{y}, v{y}, v{t1}")
        a(f"v_mul_f32 v{z}, v{z}, v{t1}")
        a(f"v_cvt_pk_bf16_f32 v{x}, v{x}, v{y}")
        a(f"v_cvt_pk_bf16_f32 v{z}, v{z}, v{z}")
        a(f"v_cmp_gt_u32 vcc, {DTHR}, v{t0}")
        a(f"v_subrev_u32 v{t0}, {DBASE}, v{t0}")
        a(f"v_lshl_or_b32 v{X}, v{x}, 16, v{t0}")
        a(f"v_mul_u32_u24 v{t1}, s7, v{SRC[k]}")
        a(f"v_lshrrev_b32 v{t1}, 24, v{t1}")
        a(f"v_lshrrev_b32 v{t2}, 8, v{DST[k]}")
        a(f"v_lshl_or_b32 v{t1}, v{t1}, 6, v{t2}")
        a(f"v_and_b32 v{x}, {M}, v{x}")
        a(f"v_or_b32 v{Y}, v{x}, v{t1}")
        a(f"v_and_b32 v{z}, {M}, v{z}")
        a(f"v_or_b32 v{Z}, v{z}, v{SRC[k]}")
        a(f"v_and_b32 v{t2}, 255, v{DST[k]}")
        a(f"v_lshlrev_b32 v{BA[k]}, 2, v{t2}")
        a(f"v_add_u32 v{BA[k]}, {HIST}, v{BA[k]}")
        if k == 4:
            a(f"v_cmp_gt_u32 s[8:9], {CH - 2048}, v0" if False else f"s_movk_i32 s8, {CH - 2048}")
            a("v_cmp_gt_u32 s[10:11], s8, v0")
            a("s_and_b64 vcc, vcc, s[10:11]")
        a(f"s_mov_b64 s[{52 + 2 * k}:{53 + 2 * k}], vcc")
        a("s_mov_b64 exec, vcc")
        a(f"ds_add_rtn_u32 v{REC[k] + 3}, v{BA[k]}, v5")
        a("s_mov_b64 exec, -1")
    a("s_waitcnt lgkmcnt(0)")
    a("s_barrier")
    a(f"v_add_u32 v6, {HIST}, v4")
    a("ds_read_b128 v[20:23], v6")
    a("s_waitcnt lgkmcnt(0)")
    a("v_add_u32 v25, v20, v21")
    a("v_add_u32 v26, v25, v22")
    a("v_add_u32 v27, v26, v23")
    a("v_mov_b32 v28, v27")
    wave_scan(a, 28)
    a("v_sub_u32 v24, v28, v27")
    a("v_add_u32 v27, v24, v26")
    a("v_add_u32 v26, v24, v25")
    a("v_add_u32 v25, v24, v20")
    a("ds_write_b128 v6, v[24:27] offset:1024")
    a("s_cmp_ge_u32 s3, 4")
    a("s_cbranch_scc1 K1_P_NOO")
    for i in range(4):
        a(f"s_cmp_eq_u32 s3, {i}")
        a(f"s_cbranch_scc0 K1_P_O{i}")
        a(f"v_lshl_or_b32 v29, v{20 + i}, 16, v{24 + i}")
        a.label(f"K1_P_O{i}")
    a("v_lshlrev_b32 v30, 12, v2")
    a("s_lshl_b32 s5, s3, 10")
    a("s_lshl_b32 s6, s2, 2")
    a("s_add_u32 s5, s5, s6")
    a(f"s_add_u32 s5, s5, {O_OFF}")
    a("buffer_store_dword v29, v30, s[48:51], s5 offen")
    a.label("K1_P_NOO")
    a("s_waitcnt lgkmcnt(0)")
    for k in range(5):
        a(f"ds_read_b32 v{20 + k}, v{BA[k]} offset:1024")
    a(f"s_mul_i32 s5, s2, {CHSTR}")
    a(f"s_add_u32 s5, s5, {REC_OFF}")
    for k in range(5):
        a(f"s_waitcnt lgkmcnt({4 - k})")
        a(f"v_add_u32 v{20 + k}, v{20 + k}, v{REC[k] + 3}")
        a(f"v_mul_u32_u24 v{20 + k}, 12, v{20 + k}")
        a(f"s_mov_b64 exec, s[{52 + 2 * k}:{53 + 2 * k}]")
        a(f"s_cbranch_execz K1_P_S{k}")
        a(f"buffer_store_dwordx3 v[{REC[k]}:{REC[k] + 2}], v{20 + k}, s[48:51], s5 offen")
        a.label(f"K1_P_S{k}")
        a("s_mov_b64 exec, -1")
    a("s_endpgm")

    a.label("K1_MLP")
    a("v_lshrrev_b32 v3, 4, v2")
    a("v_and_b32 v4, 15, v2")
    a(f"s_sub_u32 s4, s2, {NCH}")
    a("s_lshl_b32 s4, s4, 6")
    a("s_lshr_b32 s5, s3, 1")
    a("s_lshl_b32 s5, s5, 4")
    a("s_add_u32 s4, s4, s5")
    a("s_and_b32 s6, s3, 1")
    a("v_add_u32 v5, s4, v4")
    a("v_lshlrev_b32 v6, 9, v5")
    a("v_lshl_add_u32 v7, v3, 4, v6")
    a("v_lshl_add_u32 v8, v3, 5, v6")
    a("s_lshl_b32 s7, s6, 4")
    a("v_lshlrev_b32 v9, 4, v2")
    a("s_waitcnt lgkmcnt(0)")
    srd(a, 36, 16, 17, N * 512)
    srd(a, 40, 26, 27, 8192)
    srd(a, 44, 28, 29, 24576)
    srd(a, 48, 32, 33, G_BYTES)
    a("s_lshl_b32 s8, s3, 10")
    a("s_mov_b32 m0, s8")
    a("buffer_load_dwordx4 v9, s[40:43], s8 offen lds")
    for k in range(3):
        a(f"s_add_u32 s9, s8, {k * 8192}")
        a(f"s_add_u32 s10, s9, 8192")
        a("s_mov_b32 m0, s10")
        a("buffer_load_dwordx4 v9, s[44:47], s9 offen lds")
    a("buffer_load_dwordx4 v[12:15], v7, s[36:39], 0 offen")
    a("buffer_load_dwordx4 v[16:19], v7, s[36:39], 0 offen offset:64")
    for k in range(3):
        a(f"buffer_load_dwordx4 v[{20 + 4 * k}:{23 + 4 * k}], v8, s[36:39], s7 offen offset:{128 * (k + 1)}")
    a("v_lshrrev_b32 v10, 2, v4")
    a("v_and_b32 v11, 3, v4")
    a("v_lshl_add_u32 v32, v3, 3, v10")
    a("v_lshlrev_b32 v32, 7, v32")
    a("v_lshl_add_u32 v32, v11, 3, v32")
    a("v_lshl_add_u32 v33, v3, 2, v10")
    a("v_mul_u32_u24 v33, 384, v33")
    a("v_lshl_add_u32 v33, v11, 5, v33")
    a("v_add_u32 v33, s7, v33")
    a("v_add_u32 v33, 8192, v33")
    a("v_mul_u32_u24 v34, 640, v5")
    a("v_lshl_add_u32 v34, v3, 4, v34")
    a("s_lshl_b32 s11, s6, 8")
    a("s_lshl_b32 s12, s6, 6")
    a("s_add_u32 s12, s12, 512")
    a("s_waitcnt vmcnt(5)")
    a("s_barrier")
    def f1(t, kb): return 40 + (t * 2 + kb) * 4
    def f2(p, T, kb): return (72 if p < 2 else 40 - 32) + ((p * 2 + T) * 2 + kb) * 4
    def rd2(p):
        for T in range(2):
            for kb in range(2):
                for u in range(2):
                    r = f2(p, T, kb) + 2 * u
                    a(f"ds_read_b64_tr_b16 v[{r}:{r + 1}], v33 offset:{kb * 12288 + u * 6144 + p * 128 + T * 8}")
    for t in range(4):
        for kb in range(2):
            for u in range(2):
                r = f1(t, kb) + 2 * u
                a(f"ds_read_b64_tr_b16 v[{r}:{r + 1}], v32 offset:{kb * 4096 + u * 512 + t * 32}")
    a("s_waitcnt vmcnt(3) lgkmcnt(0)")
    rd2(0); rd2(1)
    D1 = [104 + 4 * t for t in range(4)]
    for t in range(4):
        a(f"v_mfma_f32_16x16x32_bf16 v[{D1[t]}:{D1[t] + 3}], v[{f1(t, 0)}:{f1(t, 0) + 3}], v[12:15], 0")
    for t in range(4):
        a(f"v_mfma_f32_16x16x32_bf16 v[{D1[t]}:{D1[t] + 3}], v[{f1(t, 1)}:{f1(t, 1) + 3}], v[16:19], v[{D1[t]}:{D1[t] + 3}]")
    a("s_nop 7")
    rd2(2)
    for t in range(4):
        for hp in range(2):
            d0, d1 = D1[t] + 2 * hp, D1[t] + 2 * hp + 1
            a(f"v_cvt_pk_bf16_f32 v56, v{d0}, v{d1}")
            a(f"v_lshlrev_b32 v{d0}, 16, v56")
            a(f"v_and_b32 v{d1}, {M}, v56")
            a(f"v_mul_f32 v57, 0xbfb8aa3b, v{d0}")
            a(f"v_mul_f32 v58, 0xbfb8aa3b, v{d1}")
            a("v_exp_f32 v57, v57")
            a("v_exp_f32 v58, v58")
            a("v_add_f32 v57, 1.0, v57")
            a("v_add_f32 v58, 1.0, v58")
            a("v_rcp_f32 v57, v57")
            a("v_rcp_f32 v58, v58")
            a(f"v_mul_f32 v57, v57, v{d0}")
            a(f"v_mul_f32 v58, v58, v{d1}")
            a(f"v_cvt_pk_bf16_f32 v{12 + 2 * t + hp}, v57, v58")
    a("s_waitcnt lgkmcnt(0)")
    def D2(p, T): return 104 + (p * 2 + T) * 4
    for kb in range(2):
        for p in range(3):
            for T in range(2):
                d = D2(p, T)
                c = "0" if kb == 0 else f"v[{d}:{d + 3}]"
                a(f"v_mfma_f32_16x16x32_bf16 v[{d}:{d + 3}], v[{f2(p, T, kb)}:{f2(p, T, kb) + 3}], v[{12 + 4 * kb}:{15 + 4 * kb}], {c}")
    a("s_waitcnt vmcnt(0)")
    for q in range(4):
        T, hp = q >> 1, q & 1
        A = 56 + 4 * q
        a(f"v_cvt_pk_bf16_f32 v{A + 3}, v{D2(0, T) + 2 * hp}, v{D2(0, T) + 2 * hp + 1}")
        a(f"v_cvt_pk_bf16_f32 v76, v{D2(1, T) + 2 * hp}, v{D2(1, T) + 2 * hp + 1}")
        a(f"v_cvt_pk_bf16_f32 v{72 + q}, v{D2(2, T) + 2 * hp}, v{D2(2, T) + 2 * hp + 1}")
        a("v_lshlrev_b32 v77, 16, v76")
        a(f"v_and_b32 v76, {M}, v76")
        for k in range(3):
            vv = 20 + 4 * k + q
            a(f"v_lshlrev_b32 v78, 16, v{vv}")
            a(f"v_and_b32 v79, {M}, v{vv}")
            a("v_mul_f32 v78, v78, v77")
            a("v_mul_f32 v79, v79, v76")
            a(f"v_cvt_pk_bf16_f32 v{A + k}, v78, v79")
        a(f"buffer_store_dwordx4 v[{A}:{A + 3}], v34, s[48:51], s11 offen offset:{64 * q}")
    a("buffer_store_dwordx4 v[72:75], v34, s[48:51], s12 offen")
    a("s_endpgm")

    a.label("K1_TAB")
    a(f"s_sub_u32 s4, s2, {NCH + NMLP}")
    a("s_lshl_b32 s4, s4, 9")
    a("v_add_u32 v3, s4, v0")
    a("v_and_b32 v4, 7, v3")
    a("v_lshlrev_b32 v4, 2, v4")
    a("s_waitcnt lgkmcnt(0)")
    srd(a, 36, 24, 25, 32)
    srd(a, 48, 32, 33, WS_USED)
    a("buffer_load_dword v5, v4, s[36:39], 0 offen")
    a("v_lshrrev_b32 v6, 3, v3")
    a(f"v_add_u32 v7, {DBASE}, v6")
    a("v_lshlrev_b32 v7, 16, v7")
    a("v_rcp_f32 v8, v7")
    a("v_mul_f32 v9, 0x40490fdb, v7")
    a("v_cvt_pk_bf16_f32 v9, v9, v9")
    a(f"v_and_b32 v9, {M}, v9")
    a("v_mul_f32 v9, 0x3e4ccccd, v9")
    a("v_cvt_pk_bf16_f32 v9, v9, v9")
    a(f"v_and_b32 v9, {M}, v9")
    a("v_mul_f32 v9, 0.15915494, v9")
    a("v_cos_f32 v9, v9")
    a("v_cvt_pk_bf16_f32 v9, v9, v9")
    a(f"v_and_b32 v9, {M}, v9")
    a("v_add_f32 v9, 1.0, v9")
    a("v_cvt_pk_bf16_f32 v9, v9, v9")
    a(f"v_and_b32 v9, {M}, v9")
    a("v_mul_f32 v9, 0.5, v9")
    a("v_cmp_lt_u32 vcc, 1, v6")
    a(f"s_movk_i32 s5, {DTHR - DBASE}")
    a("v_cmp_gt_u32 s[6:7], s5, v6")
    a("s_and_b64 vcc, vcc, s[6:7]")
    a("v_cndmask_b32 v9, 0, v9, vcc")
    a("s_waitcnt vmcnt(0)")
    a("v_lshlrev_b32 v10, 16, v5")
    a(f"v_and_b32 v11, {M}, v5")
    a("v_mul_f32 v10, v10, v7")
    a("v_mul_f32 v11, v11, v7")
    a("v_cvt_pk_bf16_f32 v10, v10, v11")
    a(f"v_and_b32 v11, {M}, v10")
    a("v_lshlrev_b32 v10, 16, v10")
    a("v_mul_f32 v10, 0.15915494, v10")
    a("v_mul_f32 v11, 0.15915494, v11")
    a("v_fract_f32 v10, v10")
    a("v_fract_f32 v11, v11")
    a("v_sin_f32 v10, v10")
    a("v_sin_f32 v11, v11")
    a("v_cvt_pk_bf16_f32 v10, v10, v11")
    a(f"v_and_b32 v11, {M}, v10")
    a("v_lshlrev_b32 v10, 16, v10")
    a("v_mul_f32 v10, v10, v8")
    a("v_mul_f32 v11, v11, v8")
    a("v_cvt_pk_bf16_f32 v10, v10, v11")
    a(f"v_and_b32 v11, {M}, v10")
    a("v_lshlrev_b32 v10, 16, v10")
    a("v_mul_f32 v10, v10, v9")
    a("v_mul_f32 v11, v11, v9")
    a("v_cvt_pk_bf16_f32 v10, v10, v11")
    a("v_lshlrev_b32 v3, 2, v3")
    a(f"s_mov_b32 s5, {RT_OFF}")
    a("buffer_store_dword v10, v3, s[48:51], s5 offen")
    a.label("K1_END")
    a("s_endpgm")

def acc_addr(a):
    a("v_lshrrev_b32 v12, 3, v0")
    a("v_lshlrev_b32 v12, 9, v12")
    a("v_and_b32 v13, 1, v0")
    a("v_lshl_add_u32 v12, v13, 8, v12")
    a("v_bfe_u32 v13, v0, 1, 2")
    a("v_lshl_add_u32 v12, v13, 4, v12")
    a(f"v_add_u32 v12, {L_ACC}, v12")

def k2(a):
    W = [160 + 16 * i for i in range(6)]
    GA = [96 + 4 * i for i in range(8)]
    GB = [128 + i for i in range(8)]
    RR = [64 + 4 * i for i in range(8)]
    BF = [136 + 4 * i for i in range(6)]
    AF = 60
    ACC = list(range(48, 56))
    vL16, vBD, vFL, vRH, vAS, vTH = 2, 3, 4, 5, 6, 7
    vRC, vRN = 8, 9
    vONE, vCTR = 10, 11
    T = list(range(12, 24))
    a.label('painn_msg_kernel')
    a(f"s_cmp_ge_u32 s2, {NBIN}")
    a("s_cbranch_scc1 K2_END")
    a("s_load_dwordx2 s[16:17], s[0:1], 0")
    a("s_load_dwordx4 s[20:23], s[0:1], 56")
    a("s_load_dwordx2 s[24:25], s[0:1], 80")
    stamp(a, 0)
    a("v_lshrrev_b32 v24, 6, v0")
    a("v_and_b32 v1, 63, v0")
    a("v_readfirstlane_b32 s3, v24")
    a("v_lshrrev_b32 v25, 3, v0")
    a("v_lshlrev_b32 v26, 2, v25")
    a("v_lshlrev_b32 v27, 4, v1")
    a("s_lshl_b32 s4, s2, 10")
    a(f"s_add_u32 s4, s4, {O_OFF}")
    a("s_waitcnt lgkmcnt(0)")
    srd(a, 36, 24, 25, WS_USED)
    srd(a, 40, 24, 25, G_BYTES)
    srd(a, 44, 16, 17, N * 512)
    srd(a, 48, 22, 23, N * 512)
    srd(a, 52, 20, 21, 16 * 384)
    OO = [28, 29, 30, 31]
    for u in range(4):
        a(f"buffer_load_dword v{OO[u]}, v26, s[36:39], s4 offen offset:{256 * u}")
    a("buffer_load_dwordx4 v[32:35], v27, s[36:39], s4 offen")
    a("s_lshl_b32 s6, s3, 10")
    for k in range(8):
        a(f"s_add_u32 s5, s6, {k * 8192 + L_RT}")
        a("s_mov_b32 m0, s5")
        a(f"s_add_u32 s5, s6, {k * 8192 + RT_OFF}")
        a("buffer_load_dwordx4 v27, s[36:39], s5 offen lds")
    a("v_lshrrev_b32 v36, 4, v0")
    a("v_lshlrev_b32 v36, 17, v36")
    a("v_and_b32 v37, 7, v0")
    a("v_lshl_add_u32 v36, v37, 4, v36")
    a("v_bfe_u32 v37, v0, 3, 1")
    a("v_lshl_add_u32 v36, v37, 8, v36")
    a("s_lshl_b32 s7, s2, 9")
    for u in range(2):
        a(f"s_add_u32 s5, s7, {u * 32 * 131072}")
        a(f"buffer_load_dwordx4 v[{96 + 8 * u}:{99 + 8 * u}], v36, s[44:47], s5 offen")
        a(f"buffer_load_dwordx4 v[{100 + 8 * u}:{103 + 8 * u}], v36, s[44:47], s5 offen offset:128")
    a("v_and_b32 v38, 31, v1")
    a("v_lshrrev_b32 v39, 5, v1")
    a("v_and_b32 v40, 3, v38")
    a("v_lshrrev_b32 v41, 2, v38")
    a("v_lshl_add_u32 v42, v40, 3, v41")
    a("v_lshlrev_b32 v43, 2, v42")
    a("v_mul_u32_u24 v44, 3072, v39")
    a("v_add_u32 v44, v44, v43")
    for p in range(3):
        for e in range(8):
            a(f"buffer_load_dword v{160 + 8 * p + e}, v44, s[52:55], 0 offen offset:{e * 384 + p * 128}")
    NLATE = 8 + 4 + 24
    a(f"v_lshlrev_b32 v{vL16}, 4, v38")
    a("v_lshrrev_b32 v45, 2, v41")
    a("v_and_b32 v46, 3, v41")
    a("v_lshl_add_u32 v46, v40, 2, v46")
    a("v_lshl_add_u32 v46, v45, 4, v46")
    a("v_lshlrev_b32 v46, 2, v46")
    a("v_add_u32 v46, 512, v46")
    a(f"v_sub_u32 v{vBD}, v46, v{vL16}")
    a(f"v_add_u32 v{vFL}, {L_ACC}, v{vL16}")
    a("v_mov_b32 v59, -1")
    a(f"v_lshlrev_b32 v{vRH}, 8, v39")
    a(f"v_add_u32 v{vRH}, {L_REC}, v{vRH}")
    a("v_and_b32 v45, 1, v41")
    a("v_lshrrev_b32 v46, 3, v38")
    a("v_lshl_add_u32 v46, v46, 2, v40")
    a("v_lshl_add_u32 v46, v45, 4, v46")
    a("v_lshlrev_b32 v46, 4, v46")
    a(f"v_add_u32 v{vAS}, {L_REC}, v46")
    a(f"v_lshlrev_b32 v{vTH}, 4, v39")
    a(f"v_mov_b32 v{vONE}, 1")
    a(f"v_mov_b32 v{vCTR}, {L_CTR}")
    for k in ACC: a(f"v_mov_b32 v{k}, 0")
    a("v_and_b32 v47, 7, v0")
    a(f"v_mul_u32_u24 v56, {CHSTR}, v25")
    a(f"s_waitcnt vmcnt({NLATE})")
    stamp(a, 1)
    a("v_lshrrev_b32 v32, 16, v32")
    a("v_lshrrev_b32 v33, 16, v33")
    a("v_lshrrev_b32 v34, 16, v34")
    a("v_lshrrev_b32 v35, 16, v35")
    a("v_max3_u32 v57, v32, v33, v34")
    a("v_max_u32 v57, v57, v35")
    a("v_add3_u32 v58, v32, v33, v34")
    a("v_add_u32 v58, v58, v35")
    wave_max(a, 57)
    wave_scan(a, 58)
    a("v_readlane_b32 s8, v57, 63")
    a("v_readlane_b32 s9, v58, 63")
    a("s_mov_b32 s10, 24")
    a(f"s_cmp_gt_u32 s9, {CAP}")
    a("s_cselect_b32 s10, 8, s10")
    a("s_mov_b32 s11, 0")
    a("s_mov_b32 s12, 1")
    a.label("K2_ROUND")
    a("v_lshlrev_b32 v12, 2, v0")
    a(f"v_add_u32 v12, {L_HIST}, v12")
    a("v_mov_b32 v13, 0")
    a("ds_write_b32 v12, v13")
    a("v_mov_b32 v13, 8")
    a(f"ds_write_b32 v{vCTR}, v13")
    def RL(u, z): return 184 + 4 * (u * 3 + z)
    def MK(u, z): return 56 + 2 * (u * 3 + z)
    a("v_add_u32 v14, s11, v47")
    for u in range(4):
        a(f"v_lshrrev_b32 v15, 16, v{OO[u]}")
        a(f"v_and_b32 v16, 0xffff, v{OO[u]}")
        a("v_add_u32 v16, v16, v14")
        a("v_mad_u32_u24 v16, v16, 12, v56")
        a(f"s_mov_b32 s5, {REC_OFF + u * 64 * CHSTR}")
        for z in range(3):
            a(f"v_add_u32 v17, {8 * z}, v14")
            a(f"v_cmp_lt_u32 s[{MK(u, z)}:{MK(u, z) + 1}], v17, v15")
            if z > 0:
                a(f"s_cmp_gt_u32 s10, {8 * z}")
                a(f"s_cselect_b64 s[{MK(u, z)}:{MK(u, z) + 1}], s[{MK(u, z)}:{MK(u, z) + 1}], 0")
            a(f"s_mov_b64 exec, s[{MK(u, z)}:{MK(u, z) + 1}]")
            a(f"s_cbranch_execz K2_L{u}_{z}")
            a(f"buffer_load_dwordx3 v[{RL(u, z)}:{RL(u, z) + 2}], v16, s[36:39], s5 offen offset:{96 * z}")
            a.label(f"K2_L{u}_{z}")
            a("s_mov_b64 exec, -1")
    a("s_waitcnt lgkmcnt(0)")
    a("s_barrier")
    a("s_waitcnt vmcnt(0)")
    stamp(a, 2)
    a("s_cmp_eq_u32 s12, 0")
    a("s_cbranch_scc1 K2_NOINIT")
    a("s_mov_b32 s5, 0x05040100")
    a("s_mov_b32 s6, 0x07060302")
    for p in range(3):
        for e2 in range(4):
            lo, hi = 160 + 8 * p + 2 * e2, 160 + 8 * p + 2 * e2 + 1
            a(f"v_perm_b32 v{BF[2 * p] + e2}, v{hi}, v{lo}, s5")
            a(f"v_perm_b32 v{BF[2 * p + 1] + e2}, v{hi}, v{lo}, s6")
    acc_addr(a)
    for u in range(2):
        if u == 1:
            a("s_cmp_ge_u32 s3, 2")
            a("s_cbranch_scc1 K2_NOINIT")
        for j in range(4):
            r = 112 + 4 * j
            a(f"v_lshlrev_b32 v{r}, 16, v{96 + 8 * u + j}")
            a(f"v_and_b32 v{r + 1}, {M}, v{96 + 8 * u + j}")
            a(f"v_lshlrev_b32 v{r + 2}, 16, v{100 + 8 * u + j}")
            a(f"v_and_b32 v{r + 3}, {M}, v{100 + 8 * u + j}")
            a(f"ds_write_b128 v12, v[{r}:{r + 3}] offset:{u * 32768 + 64 * j}")
    a.label("K2_NOINIT")
    for u in range(4):
        for z in range(3):
            r = RL(u, z)
            a(f"s_mov_b64 exec, s[{MK(u, z)}:{MK(u, z) + 1}]")
            a(f"s_cbranch_execz K2_H{u}_{z}")
            a(f"v_and_b32 v12, 0xffff, v{r + 1}")
            a(f"v_lshlrev_b32 v12, 2, v12")
            a(f"v_add_u32 v12, {L_HIST}, v12")
            a(f"ds_add_rtn_u32 v{r + 3}, v12, v{vONE}")
            a.label(f"K2_H{u}_{z}")
    a("s_mov_b64 exec, -1")
    a("s_waitcnt lgkmcnt(0)")
    a("s_barrier")
    a(f"v_add_u32 v12, {L_HIST}, v27")
    a("ds_read_b128 v[16:19], v12")
    a("s_waitcnt lgkmcnt(0)")
    a("v_add_u32 v21, v16, v17")
    a("v_add_u32 v22, v21, v18")
    a("v_add_u32 v23, v22, v19")
    a("v_mov_b32 v13, v23")
    wave_scan(a, 13)
    a("v_sub_u32 v20, v13, v23")
    a("v_add_u32 v23, v20, v22")
    a("v_add_u32 v22, v20, v21")
    a("v_add_u32 v21, v20, v16")
    a(f"ds_write_b128 v12, v[20:23] offset:{NKEY * 4}")
    a("v_readlane_b32 s13, v13, 63")
    a("v_add_u32 v14, s13, v38")
    a("v_lshlrev_b32 v14, 4, v14")
    a(f"v_add_u32 v14, {L_REC}, v14")
    a("v_mov_b32 v16, 0")
    a("v_mov_b32 v17, 0")
    a("v_mov_b32 v18, 0")
    a("v_mov_b32 v19, 0x7f000000")
    a("ds_write_b128 v14, v[16:19]")
    a("s_add_u32 s14, s13, 31")
    a("s_lshr_b32 s14, s14, 5")
    a("s_waitcnt lgkmcnt(0)")
    a("s_movk_i32 s5, 640")
    for u in range(4):
        for z in range(3):
            r = RL(u, z)
            a(f"s_mov_b64 exec, s[{MK(u, z)}:{MK(u, z) + 1}]")
            a(f"s_cbranch_execz K2_S{u}_{z}")
            a(f"v_and_b32 v12, 0xffff, v{r + 1}")
            a(f"v_lshlrev_b32 v12, 2, v12")
            a(f"v_add_u32 v12, {L_START}, v12")
            a(f"ds_read_b32 v12, v12")
            a(f"v_and_b32 v13, 0xffff, v{r + 2}")
            a(f"v_and_b32 v{r + 2}, {M}, v{r + 2}")
            a("s_waitcnt lgkmcnt(0)")
            a(f"v_add_u32 v12, v12, v{r + 3}")
            a(f"v_mul_u32_u24 v{r + 3}, s5, v13")
            a(f"v_lshlrev_b32 v12, 4, v12")
            a(f"v_add_u32 v12, {L_REC}, v12")
            a(f"ds_write_b128 v12, v[{r}:{r + 3}]")
            a.label(f"K2_S{u}_{z}")
    a("s_mov_b64 exec, -1")
    a("s_waitcnt lgkmcnt(0)")
    a("s_barrier")
    stamp(a, 3)
    a("s_mov_b32 s15, s3")
    a("s_cmp_ge_u32 s15, s14")
    a("s_cbranch_scc1 K2_DONE")
    a("s_lshl_b32 s5, s15, 9")
    a(f"v_add_u32 v{vRC}, s5, v{vRH}")
    a(f"v_add_u32 v{T[0]}, s5, v{vAS}")
    for t in range(8):
        a(f"ds_read_b128 v[{RR[t]}:{RR[t] + 3}], v{vRC} offset:{16 * t}")
    a(f"ds_read_b64 v[{T[2]}:{T[3]}], v{T[0]}")
    a(f"ds_read_b32 v{T[4]}, v{T[0]} offset:20")
    def issue(s):
        a(f"v_add_u32 v{RR[s] + 3}, v{RR[s] + 3}, v{vL16}")
        a(f"v_add_u32 v{T[11]}, v{RR[s] + 3}, v{vBD}")
        a(f"buffer_load_dwordx4 v[{GA[s]}:{GA[s] + 3}], v{RR[s] + 3}, s[40:43], 0 offen")
        a(f"buffer_load_dword v{GB[s]}, v{T[11]}, s[40:43], 0 offen")
    for t in range(7):
        a(f"s_waitcnt lgkmcnt({9 - t})")
        issue(t)
    a("s_waitcnt lgkmcnt(0)")
    a(f"v_cmp_ne_u16 s[28:29], v{T[3]}, v{T[4]}")
    a(f"v_mad_u32_u16 v{T[2]}, v{T[2]}, 32, v{vTH}")
    a(f"ds_read_b128 v[{AF}:{AF + 3}], v{T[2]} offset:{L_RT}")
    flush_blocks = []
    OLD = 40
    def flush_code(t, tag):
        s = t % 8
        a(f"v_and_b32 v{T[10]}, 63, v{RR[s] + 1}")
        a(f"v_lshl_add_u32 v{T[10]}, v{T[10]}, 10, v{vFL}")
        a.label(f"K2_FRT{tag}{t}")
        a(f"ds_wrxchg_rtn_b32 v{T[11]}, v{T[10]}, v59")
        a(f"ds_read_b128 v[32:35], v{T[10]}")
        a(f"ds_read_b128 v[40:43], v{T[10]} offset:512")
        a("s_mov_b64 s[30:31], exec")
        a("s_waitcnt lgkmcnt(0)")
        a(f"v_cmpx_ne_u32 vcc, -1, v{T[11]}")
        a(f"v_add_f32 v32, v{T[11]}, v{ACC[0]}")
        for k in range(1, 4): a(f"v_add_f32 v{32 + k}, v{32 + k}, v{ACC[k]}")
        for k in range(4, 8): a(f"v_add_f32 v{36 + k}, v{36 + k}, v{ACC[k]}")
        a("v_min_u32 v32, -2, v32")
        a(f"ds_write_b128 v{T[10]}, v[40:43] offset:512")
        a(f"ds_write_b128 v{T[10]}, v[32:35]")
        for k in range(8):
            a(f"v_mov_b32 v{ACC[k]}, 0")
        a("s_andn2_b64 exec, s[30:31], exec")
        a(f"s_cbranch_execnz K2_FRT{tag}{t}")
        a("s_mov_b64 exec, -1")
    def step(t, last, tag):
        s = t % 8
        younger = min(6, 15 - t) if last else 6
        a(f"s_waitcnt vmcnt({2 * younger})")
        g = GA[s]; b = GB[s]; rx, ry, rz = RR[s], RR[s] + 1, RR[s] + 2
        e = T[0:5]
        We = [W[0] + t, W[2] + t, W[4] + t]; Wo = [W[1] + t, W[3] + t, W[5] + t]
        for j in range(4): a(f"v_lshlrev_b32 v{e[j]}, 16, v{g + j}")
        a(f"v_lshlrev_b32 v{e[4]}, 16, v{b}")
        for j in range(4): a(f"v_and_b32 v{g + j}, {M}, v{g + j}")
        a(f"v_and_b32 v{b}, {M}, v{b}")
        a(f"v_mul_f32 v{e[4]}, v{e[4]}, v{We[2]}")
        a(f"v_mul_f32 v{b}, v{b}, v{Wo[2]}")
        for k in range(3):
            a(f"v_fmac_f32 v{ACC[2 * (k + 1)]}, v{e[k]}, v{We[1]}")
            a(f"v_fmac_f32 v{ACC[2 * (k + 1) + 1]}, v{g + k}, v{Wo[1]}")
        a(f"v_fmac_f32 v{ACC[0]}, v{e[3]}, v{We[0]}")
        a(f"v_fmac_f32 v{ACC[1]}, v{g + 3}, v{Wo[0]}")
        for k in range(3):
            a(f"v_fmac_f32 v{ACC[2 * (k + 1)]}, v{e[4]}, v{RR[s] + k}")
            a(f"v_fmac_f32 v{ACC[2 * (k + 1) + 1]}, v{b}, v{RR[s] + k}")
        if t == 15:
            flush_code(t, tag)
        else:
            m0 = 8 * (t // 4) + t % 4
            a(f"s_and_b32 s5, s26, {(1 << m0) | (1 << (m0 + 4)):#x}")
            a(f"s_cbranch_scc1 K2_FL{tag}{t}")
            a.label(f"K2_FR{tag}{t}")
            flush_blocks.append((t, tag))
        if not (last and t >= 8):
            base = vRC if t < 8 else vRN
            a(f"ds_read_b128 v[{RR[s]}:{RR[s] + 3}], v{base} offset:{16 * ((t + 8) % 16)}")
            if not (last and t >= 9):
                a("s_waitcnt lgkmcnt(1)")
                issue((t + 7) % 8)
        elif t == 8:
            a("s_waitcnt lgkmcnt(0)")
            issue((t + 7) % 8)
    a.label("K2_BATCH")
    a("s_mov_b32 s26, s28")
    a("s_mov_b64 exec, 1")
    a(f"ds_add_rtn_u32 v{T[9]}, v{vCTR}, v{vONE}")
    a("s_mov_b64 exec, -1")
    a("s_waitcnt lgkmcnt(1)")
    for i in (4, 5, 2, 3, 0, 1):
        a(f"v_mfma_f32_32x32x16_bf16 v[{W[i]}:{W[i] + 15}], v[{AF}:{AF + 3}], v[{BF[i]}:{BF[i] + 3}], 0")
    a("s_waitcnt lgkmcnt(0)")
    a(f"v_readfirstlane_b32 s27, v{T[9]}")
    a("s_lshl_b32 s5, s27, 9")
    a(f"s_min_u32 s5, s5, {CAP * 16}")
    a(f"v_add_u32 v{vRN}, s5, v{vRH}")
    a(f"v_add_u32 v{T[5]}, s5, v{vAS}")
    a(f"ds_read_b64 v[{T[6]}:{T[7]}], v{T[5]}")
    a(f"ds_read_b32 v{T[8]}, v{T[5]} offset:20")
    a("s_nop 7")
    for t in range(8):
        step(t, False, 'A')
        if t == 1:
            a(f"v_cmp_ne_u16 s[28:29], v{T[7]}, v{T[8]}")
            a(f"v_and_b32 v{T[6]}, 0x7ff, v{T[6]}")
            a(f"v_mad_u32_u16 v{T[6]}, v{T[6]}, 32, v{vTH}")
            a(f"ds_read_b128 v[{AF}:{AF + 3}], v{T[6]} offset:{L_RT}")
    a("s_cmp_ge_u32 s27, s14")
    a("s_cbranch_scc1 K2_LAST")
    for t in range(8, 16):
        step(t, False, 'A')
    a(f"v_mov_b32 v{vRC}, v{vRN}")
    a("s_branch K2_BATCH")
    a.label("K2_LAST")
    for t in range(8, 16):
        step(t, True, 'B')
    a.label("K2_DONE")
    a("s_waitcnt lgkmcnt(0)")
    stamp(a, 4)
    a("s_barrier")
    stamp(a, 5)
    stamp_store(a, 6, 36, 1)
    a("s_add_u32 s11, s11, s10")
    a("s_mov_b32 s12, 0")
    a("s_cmp_lt_u32 s11, s8")
    a("s_cbranch_scc1 K2_ROUND")
    acc_addr(a)
    for u in range(2):
        if u == 1:
            a("s_cmp_ge_u32 s3, 2")
            a("s_cbranch_scc1 K2_END")
        for j in range(4):
            a(f"ds_read_b128 v[{64 + 4 * j}:{67 + 4 * j}], v12 offset:{u * 32768 + 64 * j}")
        a(f"s_add_u32 s5, s7, {u * 32 * 131072}")
        a("s_waitcnt lgkmcnt(0)")
        for j in range(4):
            a(f"v_cvt_pk_bf16_f32 v{80 + 8 * u + j}, v{64 + 4 * j}, v{65 + 4 * j}")
            a(f"v_cvt_pk_bf16_f32 v{84 + 8 * u + j}, v{66 + 4 * j}, v{67 + 4 * j}")
        a(f"buffer_store_dwordx4 v[{80 + 8 * u}:{83 + 8 * u}], v36, s[48:51], s5 offen")
        a(f"buffer_store_dwordx4 v[{84 + 8 * u}:{87 + 8 * u}], v36, s[48:51], s5 offen offset:128")
    a.label("K2_END")
    a("s_endpgm")
    for t, tag in flush_blocks:
        m0 = 8 * (t // 4) + t % 4
        a.label(f"K2_FL{tag}{t}")
        a(f"s_bitcmp1_b32 s26, {m0}")
        a("s_cselect_b32 exec_lo, -1, 0")
        a(f"s_bitcmp1_b32 s26, {m0 + 4}")
        a("s_cselect_b32 exec_hi, -1, 0")
        flush_code(t, tag)
        a(f"s_branch K2_FR{tag}{t}")

def kd(name, vgpr, sgpr):
    return f""".amdhsa_kernel {name}
  .amdhsa_next_free_vgpr {vgpr}
  .amdhsa_next_free_sgpr {sgpr}
  .amdhsa_accum_offset {(vgpr + 3) // 4 * 4}
  .amdhsa_group_segment_fixed_size 0
  .amdhsa_kernarg_size 88
  .amdhsa_user_sgpr_count 2
  .amdhsa_user_sgpr_kernarg_segment_ptr 1
  .amdhsa_system_sgpr_workgroup_id_x 1
.end_amdhsa_kernel
"""

def main():
    ref = open('gather_scatter__molecular_angular_painn__graph.s.ref').read().split('\n')
    head = [l for l in ref if l.startswith(';') and '@launch' not in l and 'Override launch' not in l and 'grid=ceil' not in l]
    out = '\n'.join(head) + '\n'
    out += f"; @launch kernel=painn_prep_kernel grid=({K1_GRID},1,1) block=(512,1,1) lds={K1_LDS}\n"
    out += f"; @launch kernel=painn_msg_kernel grid=({NBIN},1,1) block=(512,1,1) lds={K2_LDS}\n"
    out += '.amdgcn_target "amdgcn-amd-amdhsa--gfx950"\n.text\n'
    for name, fn in (('painn_prep_kernel', k1), ('painn_msg_kernel', k2)):
        a = Asm(); fn(a)
        out += f".globl {name}\n.p2align 8\n.type {name},@function\n" + a.padded(verbose=True)
    out += '.section .rodata,"a"\n.p2align 6\n' + kd('painn_prep_kernel', 128, 100 if PROF else 80) + '.p2align 6\n' + kd('painn_msg_kernel', 256, 100)
    open(sys.argv[1], 'w').write(out)
    print('K2_LDS', K2_LDS, 'K1 grid', K1_GRID)

main()
```
